```python
import torch

def _softmax(x, axis=-1):
    return torch.softmax(x, dim=axis)
def _gelu(x):
    return torch.nn.functional.gelu(x, approximate="tanh")
def _silu(x):
    return torch.nn.functional.silu(x)
def _sigmoid(x):
    return torch.sigmoid(x)
def _layernorm(x, axis=-1, eps=1e-5):
    m = x.mean(dim=axis, keepdim=True)
    v = x.var(dim=axis, keepdim=True, unbiased=False)
    return (x - m) / torch.sqrt(v + eps)
def _scatter_add(tgt, idx, src, axis=0):
    return tgt.clone().index_add_(axis, idx, src)
def _segment_sum(src, seg, n):
    out = torch.zeros((n,) + src.shape[1:], dtype=src.dtype)
    return out.index_add_(0, seg, src)
def _pad(x, pw):
    flat = tuple(v for pair in reversed(pw) for v in pair)
    return torch.nn.functional.pad(x, flat)

kernel_name = 'gated_mix__ssm_conv_s4__ssm_conv_s4d__prompt'

def setup_inputs():

    _w = (lambda a: (lambda t: t.to(torch.bfloat16) if t.is_floating_point() else t)(torch.as_tensor(a)))
    def _A_setup():
        B, L, D, N = 1, 2048, 640, 192
        A_re = -(lambda _x: torch.exp(torch.as_tensor(_x)))((lambda *s: torch.randn(*s, dtype=torch.bfloat16) * 6.4)(D, N))
        A_im = torch.pi * (lambda *s: torch.randn(*s, dtype=torch.bfloat16) * 0.05)(D, N)
        B_re = (lambda *s: torch.randn(*s, dtype=torch.bfloat16) * 0.05)(D, N)
        B_im = (lambda *s: torch.randn(*s, dtype=torch.bfloat16) * 0.05)(D, N)
        C_re = (lambda *s: torch.randn(*s, dtype=torch.bfloat16) * 0.05)(D, N)
        C_im = (lambda *s: torch.randn(*s, dtype=torch.bfloat16) * 0.05)(D, N)
        log_dt = (lambda *s: torch.randn(*s, dtype=torch.bfloat16) * 0.05)(D) * 0.5 - 4.0
        Dskip = (lambda *s: torch.randn(*s, dtype=torch.bfloat16) * 0.05)(D)
        return {
            "u": _w((lambda *s: torch.randn(*s, dtype=torch.bfloat16) * 0.05)(B, L, D)),
            "A_re": _w(A_re),
            "A_im": _w(A_im),
            "B_re": _w(B_re),
            "B_im": _w(B_im),
            "C_re": _w(C_re),
            "C_im": _w(C_im),
            "log_dt": _w(log_dt),
            "Dskip": _w(Dskip),
        }
    _A_in = _A_setup()

    def _B_setup():
        Bsz, L, D, N = 1, 2048, 640, 192
        return {
            "u": _w((lambda *s: torch.randn(*s, dtype=torch.bfloat16) * 0.05)(Bsz, L, D)),
            "log_A_real": _w((lambda *s: torch.randn(*s, dtype=torch.bfloat16) * 6.4)(D, N) * 0.5),
            "A_imag": _w((lambda *s: torch.randn(*s, dtype=torch.bfloat16) * 0.05)(D, N) * 3.14),
            "C_real": _w((lambda *s: torch.randn(*s, dtype=torch.bfloat16) * 0.05)(D, N) / N ** 0.5),
            "C_imag": _w((lambda *s: torch.randn(*s, dtype=torch.bfloat16) * 0.05)(D, N) / N ** 0.5),
            "log_dt": _w((lambda *s: torch.randn(*s, dtype=torch.bfloat16) * 0.05)(D) * 0.5 - 4.0),
            "D_skip": _w((lambda *s: torch.randn(*s, dtype=torch.bfloat16) * 0.05)(D)),
        }
    _B_in = _B_setup()

    return {
        "A_u": _A_in["u"],
        "A_A_re": _A_in["A_re"],
        "A_A_im": _A_in["A_im"],
        "A_B_re": _A_in["B_re"],
        "A_B_im": _A_in["B_im"],
        "A_C_re": _A_in["C_re"],
        "A_C_im": _A_in["C_im"],
        "A_log_dt": _A_in["log_dt"],
        "A_Dskip": _A_in["Dskip"],
        "B_u": _B_in["u"],
        "B_log_A_real": _B_in["log_A_real"],
        "B_A_imag": _B_in["A_imag"],
        "B_C_real": _B_in["C_real"],
        "B_C_imag": _B_in["C_imag"],
        "B_log_dt": _B_in["log_dt"],
        "B_D_skip": _B_in["D_skip"],
        "gate_w": _w((lambda *s: torch.randn(*s, dtype=torch.bfloat16) * 0.05)(640) * 16.0),
    }

def reference(A_u, A_A_re, A_A_im, A_B_re, A_B_im, A_C_re, A_C_im, A_log_dt, A_Dskip, B_u, B_log_A_real, B_A_imag, B_C_real, B_C_imag, B_log_dt, B_D_skip, gate_w):
    def _A_ref(u, A_re, A_im, B_re, B_im, C_re, C_im, log_dt, Dskip):
        Bsz, L, D = u.shape
        dt = torch.exp(log_dt)[:, None]
        A = A_re + 1j * A_im
        Bc = B_re + 1j * B_im
        Cc = C_re + 1j * C_im
        logdA = dt * A
        dB = dt * Bc
        l = (lambda x, dt: x.to(dt))(torch.arange(L), A_re.dtype)
        P = torch.exp(logdA[:, :, None] * l[None, None, :])
        K = torch.einsum("dn,dnl,dn->dl", Cc, P, dB).real
        L2 = 2 * L
        Kp = _pad(K, ((0, 0), (0, L)))
        up = (lambda x, *d: x.permute(*d))(u, 0, 2, 1)
        up = _pad(up, ((0, 0), (0, 0), (0, L)))
        Kf = (lambda x, axes=(-2,-1): torch.fft.rfft2(x.float(), dim=axes))(Kp[:, None, :], axes=(-2, -1))
        Uf = (lambda x, axes=(-2,-1): torch.fft.rfft2(x.float(), dim=axes))(up[:, :, None, :], axes=(-2, -1))
        Yf = Uf * Kf[None, :, :, :]
        y = (lambda x, s, axes=(-2,-1): torch.fft.irfft2(x, s=s, dim=axes).to(torch.bfloat16))(Yf, (1, L2), axes=(-2, -1))[:, :, 0, :L]
        y = (lambda x, *d: x.permute(*d))(y, 0, 2, 1) + u * Dskip[None, None, :]
        return y

    def _B_ref(u, log_A_real, A_imag, C_real, C_imag, log_dt, D_skip):
        L = u.shape[1]
        dt = torch.exp(log_dt)
        A = -torch.exp(log_A_real) + 1j * A_imag
        C = (C_real + 1j * C_imag) * dt[:, None]
        pos = (lambda x, dt: x.to(dt))(torch.arange(L), log_dt.dtype)
        P = torch.exp((A * dt[:, None])[:, :, None] * pos[None, None, :])
        K = 2.0 * torch.einsum("dn,dnl->dl", C, P).real
        L2 = 2 * L
        u_t = (lambda x, *d: x.permute(*d))(u, 0, 2, 1)
        Kf = (lambda x, *a, **k: torch.fft.rfft(x.float(), *a, **k))(K, L2)
        Uf = (lambda x, *a, **k: torch.fft.rfft(x.float(), *a, **k))(u_t, L2)
        y = (lambda x, *a, **k: torch.fft.irfft(x, *a, **k).to(torch.bfloat16))(Uf * Kf[None, :, :], L2)[:, :, :L]
        y = (lambda x, *d: x.permute(*d))(y, 0, 2, 1)
        return y + u * D_skip[None, None, :]

    x = A_u
    g = _sigmoid((x * gate_w).sum(-1, keepdims=True))
    a = _A_ref(x, A_A_re, A_A_im, A_B_re, A_B_im, A_C_re, A_C_im, A_log_dt, A_Dskip)
    b = _B_ref(x, B_log_A_real, B_A_imag, B_C_real, B_C_imag, B_log_dt, B_D_skip)
    return g * a + (1 - g) * b
```

```python
import re

class Asm:
    def __init__(self):
        self.lines = []
        self.nlab = 0
    def __call__(self, s):
        for ln in s.strip('\n').split('\n'):
            ln = ln.strip()
            if ln:
                self.lines.append(ln)
    def label(self, name):
        self.lines.append(name + ':')
    def newlabel(self, p='L'):
        self.nlab += 1
        return '%s_%d' % (p, self.nlab)
    def text(self):
        out = []
        for ln in self.lines:
            if ln.endswith(':') or ln.startswith('.'):
                out.append(ln)
            else:
                out.append('    ' + ln)
        return '\n'.join(out) + '\n'

def vr(a, n=1):
    return 'v%d' % a if n == 1 else 'v[%d:%d]' % (a, a + n - 1)
def sr(a, n=1):
    return 's%d' % a if n == 1 else 's[%d:%d]' % (a, a + n - 1)

TRANS = ('v_exp_f32', 'v_log_f32', 'v_rcp_f32', 'v_rsq_f32', 'v_sqrt_f32', 'v_sin_f32', 'v_cos_f32')

def _regs(tok):
    tok = tok.strip().lstrip('-')
    tok = tok.replace('abs(', '').replace(')', '').replace('|', '')
    m = re.fullmatch(r'([vs])(\d+)', tok)
    if m: return {(m.group(1), int(m.group(2)))}
    m = re.fullmatch(r'([vs])\[(\d+):(\d+)\]', tok)
    if m: return {(m.group(1), i) for i in range(int(m.group(2)), int(m.group(3)) + 1)}
    if tok in ('vcc', 'vcc_lo', 'vcc_hi'): return {('s', 'vcc')}
    if tok in ('exec', 'exec_lo', 'exec_hi'): return {('s', 'exec')}
    if tok == 'm0': return {('s', 'm0')}
    return set()

def parse(ln):
    ln = ln.split(';')[0].strip()
    if not ln or ln.endswith(':') or ln.startswith('.'): return None
    parts = ln.split(None, 1)
    op = parts[0]
    rest = parts[1] if len(parts) > 1 else ''
    ops = []; depth = 0; cur = ''
    for ch in rest:
        if ch == '[': depth += 1
        if ch == ']': depth -= 1
        if ch == ',' and depth == 0:
            ops.append(cur); cur = ''
        else: cur += ch
    if cur: ops.append(cur)
    ops = [o.strip() for o in ops]
    if ops:
        last = ops[-1].split()
        mods = ' '.join(last[1:]); ops[-1] = last[0] if last else ''
    else: mods = ''
    d = dict(op=op, ops=ops, mods=mods, text=ln)
    kind = 'other'
    if op.startswith('v_mfma'): kind = 'mfma'
    elif op.startswith('v_'): kind = 'valu'
    elif op.startswith('ds_'): kind = 'ds'
    elif op.startswith(('buffer_', 'global_', 'flat_')): kind = 'vmem'
    elif op.startswith('s_'): kind = 'salu'
    d['kind'] = kind
    R = [_regs(o) for o in ops]
    wr = set(); rd = set()
    if kind in ('valu', 'mfma'):
        wr = set(R[0]);
        for x in R[1:]: rd |= x
        if op.startswith(('v_fmac', 'v_dot2c')) or '_dpp' in op or 'dpp' in mods or 'row_' in mods or 'wave_' in mods or 'quad_perm' in mods: rd |= R[0]
        if op.startswith('v_cmpx'): wr |= {('s', 'exec')}
        if op.startswith(('v_add_co', 'v_sub_co', 'v_addc_co')): wr |= R[1]
        if op.startswith('v_permlane'): wr |= R[1]; rd |= R[0]
    elif kind == 'ds':
        if 'read' in op or 'permute' in op or 'swizzle' in op:
            wr = set(R[0])
            for x in R[1:]: rd |= x
        else:
            for x in R: rd |= x
        if 'addtid' in op: rd |= {('s', 'm0')}
    elif kind == 'vmem':
        if '_load' in op:
            wr = set(R[0])
            for x in R[1:]: rd |= x
        else:
            for x in R: rd |= x
    elif kind == 'salu':
        if op.startswith(('s_cmp', 's_cbranch', 's_branch', 's_waitcnt', 's_nop', 's_barrier', 's_sleep', 's_setprio', 's_endpgm', 's_bitcmp')):
            for x in R: rd |= x
        else:
            if R: wr = set(R[0])
            for x in R[1:]: rd |= x
            if 'saveexec' in op: wr |= {('s', 'exec')}
    d['wr'] = wr; d['rd'] = rd; d['R'] = R
    d['dpp'] = kind == 'valu' and ('row_' in mods or 'wave_' in mods or 'quad_perm' in mods)
    if op == 's_nop': d['ws'] = int(ops[0], 0) + 1
    else: d['ws'] = 1
    return d

def passes(op):
    return 8 if '32x32x16' in op else 4

def need(p, c):
    n = 0
    pv = {r for r in p['wr'] if r[0] == 'v'}; ps = {r for r in p['wr'] if r[0] == 's'}
    if p['kind'] == 'valu':
        if p['op'].split('_e')[0] in TRANS and c['kind'] in ('valu', 'mfma') and c['op'] not in TRANS and pv & c['rd']: n = max(n, 1)
        if c['kind'] == 'mfma' and pv & c['rd']: n = max(n, 2)
        if c['dpp'] and pv & c['rd']: n = max(n, 2)
        if c['dpp'] and ('s', 'exec') in ps: n = max(n, 5)
        if c['op'].startswith(('v_readlane', 'v_readfirstlane')) and pv & c['rd']: n = max(n, 1)
        if c['op'].startswith('v_permlane') and pv & c['rd']: n = max(n, 2)
        if c['kind'] == 'vmem' and ps & c['rd']: n = max(n, 5)
        if c['kind'] == 'valu' and ps & c['rd']: n = max(n, 2)
        if c['kind'] == 'mfma' and ('s', 'exec') in ps: n = max(n, 4)
        if p['op'].startswith('v_dot') and (pv & (c['rd'] | c['wr'])):
            if c['op'] == p['op'] and not (pv & (c['R'][1] | c['R'][2])): pass
            else: n = max(n, 3)
        if 'sdwa' in p['op'] and c['kind'] == 'valu' and pv & (c['rd'] | c['wr']): n = max(n, 1)
    if p['kind'] == 'salu' and ('s', 'm0') in ps and ('s', 'm0') in c['rd'] and c['kind'] in ('ds', 'vmem'): n = max(n, 1)
    if p['kind'] == 'mfma':
        k = passes(p['op'])
        if c['kind'] == 'mfma':
            if pv & (c['R'][1] | c['R'][2]): n = max(n, k + 4)
            if pv & c['R'][3] and (c['R'][3] != pv or passes(c['op']) != k): n = max(n, k + 2)
        elif c['kind'] in ('valu', 'ds', 'vmem'):
            if pv & (c['rd'] | c['wr']): n = max(n, k + 4)
            if c['kind'] == 'valu' and p['R'][3] & c['wr']: n = max(n, k - 1)
    if p['kind'] == 'vmem' and '_store_dwordx' in p['op'] and p['op'][-1] in '34':
        dat = p['R'][0] if p['op'].startswith('buffer') else p['R'][1]
        if dat & c['wr']: n = max(n, 2)
    return n

def check(lines):
    ins = []; labels = {}
    for ln in lines:
        s = ln.split(';')[0].strip()
        if s.endswith(':'):
            labels[s[:-1]] = len(ins); continue
        d = parse(ln)
        if d: ins.append(d)
    bad = []
    def succ(i):
        op = ins[i]['op']
        if op == 's_endpgm': return []
        if op == 's_branch': return [labels[ins[i]['ops'][0]]]
        if op.startswith('s_cbranch'): return [i + 1, labels[ins[i]['ops'][0]]]
        return [i + 1]
    for i, p in enumerate(ins):
        if p['kind'] not in ('valu', 'mfma', 'salu', 'vmem'): continue
        stack = [(j, 0) for j in succ(i)]
        seen = set()
        while stack:
            j, dist = stack.pop()
            if j >= len(ins) or dist >= 13 or (j, dist) in seen: continue
            seen.add((j, dist))
            c = ins[j]
            n = need(p, c)
            if n > dist:
                bad.append((p['text'], c['text'], n, dist))
            for k in succ(j): stack.append((k, dist + c['ws']))
    return bad
```

```python
import sys
sys.path.insert(0, 'gen')
from asmlib import *

NAME = 'gated_mix__ssm_conv_s4__ssm_conv_s4d__prompt_kernel'
PITCH = 3088
U0 = 98816; USZ = 4608
PT0 = 112640; PTSZ = 2240
Q20 = 126080; Q2SZ = 512
Q30 = 129152; Q3SZ = 320
FL = 131072
GW0 = 131136; GWSZ = 3072
LDS_TOTAL = 140352
M0HI = 11 * PITCH
LOG2E = 0x3fb8aa3b
INV2PI = 0x3e22f983
BOUND = True
CMUL1 = 'op_sel_hi:[1,0]'
CMUL2 = 'op_sel:[1,1,0] op_sel_hi:[0,1,1] neg_lo:[1,0,0]'

def gen(stamps=False):
    a = Asm()
    nst = [0]
    def stamp(k):
        if stamps:
            a('s_memrealtime s[%d:%d]' % (80 + 2 * k, 81 + 2 * k))
    def cmul(dst, x, m, t=28):
        a('v_pk_mul_f32 %s, %s, %s %s' % (vr(t, 2), vr(x, 2), vr(m, 2), CMUL1))
        a('v_pk_fma_f32 %s, %s, %s, %s %s' % (vr(dst, 2), vr(x, 2), vr(m, 2), vr(t, 2), CMUL2))
    def wait_flags(mask, thr, vaddr, vt, sleep=0):
        L = a.newlabel('POLL')
        if BOUND: a('s_mov_b32 s1, 0')
        a.label(L)
        if BOUND:
            a('s_add_u32 s1, s1, 1')
            a('s_cmp_gt_u32 s1, 0x8000')
            a('s_cbranch_scc1 %s_X' % L)
        a('ds_read_b32 %s, %s' % (vr(vt), vr(vaddr)))
        if sleep: a('s_sleep %d' % sleep)
        a('s_waitcnt lgkmcnt(0)')
        a('v_cmp_le_u32 vcc, %s, %s' % (thr, vr(vt)))
        a('s_nop 0')
        a('s_andn2_b32 s12, %s, vcc_lo' % mask)
        a('s_cbranch_scc1 %s' % L)
        if BOUND: a.label(L + '_X')
    def set_flag(val, vt):
        a('v_mov_b32 %s, %s' % (vr(vt), val))
        a('ds_write_b32 v47, %s' % vr(vt))

    a('''
    s_load_dwordx16 s[16:31], s[0:1], 0
    s_load_dwordx16 s[32:47], s[0:1], 64
    s_load_dwordx8 s[48:55], s[0:1], 128
    ''')
    stamp(0)
    a('''
    s_cmp_ge_u32 s2, 256
    s_cbranch_scc1 END
    v_lshrrev_b32 v1, 6, v0
    v_lshlrev_b32 v45, 4, v0
    v_and_b32 v0, 63, v0
    v_readfirstlane_b32 s3, v1
    s_cmp_lt_u32 s2, 32
    s_cbranch_scc1 PRODUCER
    s_and_b32 s4, s2, 7
    s_lshr_b32 s5, s2, 3
    s_sub_u32 s5, s5, 4
    s_cmp_ge_u32 s5, 11
    s_cselect_b32 s12, 1, 0
    s_cmp_ge_u32 s5, 22
    s_cselect_b32 s12, 2, s12
    s_cselect_b32 s13, 13, 29
    s_cselect_b32 s14, -64, 16
    s_mul_i32 s15, s12, 11
    s_sub_u32 s15, s5, s15
    s_mul_i32 s15, s15, 3
    s_min_u32 s15, s15, s13
    s_lshl_b32 s12, s12, 5
    s_add_u32 s15, s15, s12
    s_bitcmp1_b32 s4, 0
    s_cselect_b32 s14, s14, 0
    s_add_u32 s15, s15, s14
    s_mul_i32 s6, s4, 80
    s_add_u32 s6, s6, s15
    s_and_b32 s7, s3, 3
    s_lshr_b32 s8, s3, 2
    s_cmp_eq_u32 s8, 1
    s_cselect_b32 s10, 1, 0
    s_cmp_eq_u32 s8, 2
    s_cselect_b32 s11, 1, 0
    s_add_u32 s13, s8, 3
    s_cmp_eq_u32 s7, 3
    s_cselect_b32 s9, s8, s7
    s_cselect_b32 s10, 1, s10
    s_cselect_b32 s11, 1, s11
    s_cselect_b32 s79, s13, s7
    s_add_u32 s12, s6, s9
    s_lshl_b32 s13, s12, 1
    s_mul_i32 s12, s12, 384
    s_lshl_b32 s14, s11, 8
    s_add_u32 s12, s12, s14
    v_lshl_add_u32 v1, v0, 1, s12
    v_mov_b32 v46, s13
    ''')
    for i in range(2, 16): a('v_mov_b32 v%d, 0' % i)
    a('''
    s_lshl_b32 s76, s3, 8
    s_add_u32 s77, s76, %d
    s_waitcnt lgkmcnt(0)
    s_cmp_eq_u32 s10, 1
    s_cselect_b64 s[64:65], s[36:37], s[18:19]
    s_cselect_b64 s[66:67], s[38:39], s[20:21]
    s_cselect_b64 s[68:69], s[40:41], s[26:27]
    s_cselect_b64 s[70:71], s[42:43], s[28:29]
    s_cselect_b64 s[72:73], s[44:45], s[30:31]
    s_cselect_b64 s[74:75], s[46:47], s[32:33]
    global_load_short_d16_hi v14, v46, s[72:73]
    global_load_short_d16_hi v2, v1, s[64:65]
    global_load_short_d16_hi v3, v1, s[66:67]
    global_load_short_d16_hi v4, v1, s[68:69]
    global_load_short_d16_hi v5, v1, s[70:71]
    s_cbranch_scc1 NOB0
    global_load_short_d16_hi v6, v1, s[22:23]
    global_load_short_d16_hi v7, v1, s[24:25]
    NOB0:
    s_mov_b32 s56, s16
    s_mov_b32 s57, s17
    s_mov_b32 s58, 2621440
    s_mov_b32 s59, 0x20000
    s_mov_b32 s60, s50
    s_mov_b32 s61, s51
    s_mov_b32 s62, 2621440
    s_mov_b32 s63, 0x20000
    s_cmp_eq_u32 s11, 1
    s_cbranch_scc1 LOADU
    global_load_short_d16_hi v8, v1, s[64:65] offset:128
    global_load_short_d16_hi v9, v1, s[66:67] offset:128
    global_load_short_d16_hi v10, v1, s[68:69] offset:128
    global_load_short_d16_hi v11, v1, s[70:71] offset:128
    global_load_short_d16_hi v15, v46, s[74:75]
    s_cmp_eq_u32 s10, 1
    s_cbranch_scc1 LOADED
    global_load_short_d16_hi v12, v1, s[22:23] offset:128
    global_load_short_d16_hi v13, v1, s[24:25] offset:128
    s_branch LOADED
    LOADU:
    s_mul_i32 s12, s5, 72
    s_lshl_b32 s13, s79, 7
    s_add_u32 s12, s12, s13
    s_lshl_b32 s13, s6, 1
    s_and_b32 s13, s13, -4
    s_cmp_ge_u32 s79, 4
    s_cselect_b32 s14, 0x40000000, 0
    v_lshl_add_u32 v143, v0, 1, s12
    ''' % M0HI)
    for k in range(3):
        if k: a('v_add_u32 v143, 768, v143')
        a('v_and_b32 v%d, 2047, v143' % (140 + k))
        a('v_mul_u32_u24 v44, 1280, v%d' % (140 + k))
        so = 's13'
        if k == 2: a('v_add_u32 v44, s14, v44')
        a('buffer_load_dwordx2 %s, v44, s[56:59], %s offen' % (vr(128 + 4 * k, 2), so))
        a('buffer_load_dwordx2 %s, v44, s[56:59], %s offen offset:1280' % (vr(130 + 4 * k, 2), so))
        a('v_lshlrev_b32 v%d, 1, v%d' % (140 + k, 140 + k))
        a('v_add_u32 v%d, %d, v%d' % (140 + k, U0 + 512, 140 + k))
    a.label('LOADED')
    stamp(1)
    a('''
    v_mov_b32 v48, 0
    v_mov_b32 v49, 0
    v_mov_b32 v50, 0
    v_mov_b32 v51, 0
    v_add_u32 v45, %d, v45
    s_mov_b32 m0, s76
    v_mov_b32 v40, 0x3f80
    ds_write_b128 v45, v[48:51]
    ds_write_b128 v45, v[48:51] offset:12288
    ds_write_b128 v45, v[48:51] offset:24576
    ds_write_addtid_b32 v40
    ''' % U0)
    for i in range(52, 64): a('v_mov_b32 v%d, 0' % i)
    a('''
    v_and_b32 v44, 31, v0
    v_mul_u32_u24 v44, %d, v44
    v_lshrrev_b32 v40, 5, v0
    v_lshl_add_u32 v44, v40, 4, v44
    v_add_u32 v44, s76, v44
    s_lshl_b32 s12, s3, 2
    s_add_u32 s12, s12, %d
    v_mov_b32 v47, s12
    v_and_b32 v46, 15, v0
    v_lshlrev_b32 v46, 2, v46
    v_add_u32 v46, %d, v46
    ''' % (PITCH, FL, FL))
    a('''
    v_lshrrev_b32 v40, 4, v0
    v_mul_u32_u24 v45, %d, v40
    v_and_b32 v41, 15, v0
    v_lshl_add_u32 v45, v41, 4, v45
    ''' % PITCH)
    a('''
    s_cmp_lg_u32 s7, 3
    s_cbranch_scc1 NOBAND
    v_lshlrev_b32 v42, 3, v40
    v_sub_u32 v42, v42, v41
    v_add_u32 v42, 16, v42
    v_min_u32 v42, 31, v42
    s_mov_b32 s13, 0x10001
    s_movk_i32 s14, 0x3f80
    ''')
    bands = [(11, 13), (6, 10), (5, 11), (4, 12), (12, 13)]
    for b, (lo, hi) in enumerate(bands):
        C = ((1 << (hi + 1)) - (1 << lo)) << 16
        r = 144 + 4 * b
        a('s_mov_b32 s12, 0x%x' % C)
        a('v_lshrrev_b32 v43, v42, s12')
        a('v_and_b32 v28, 0xaa, v43')
        a('v_and_b32 v43, 0x55, v43')
        a('v_lshl_or_b32 v43, v28, 15, v43')
        for d in range(4):
            if d: a('v_lshrrev_b32 v43, 2, v43')
            a('v_and_b32 v%d, s13, v43' % (r + d))
            if b < 4: a('v_mul_u32_u24 v%d, s14, v%d' % (r + d, r + d))
    a.label('NOBAND')
    a('''
    s_waitcnt lgkmcnt(0)
    s_barrier
    s_cmp_eq_u32 s11, 1
    s_cbranch_scc1 W1
    s_waitcnt vmcnt(0)
    W1:
    s_waitcnt vmcnt(6)
    ''')
    stamp(2)
    a('''
    v_mul_f32 v14, 0x%x, v14
    s_mov_b32 s12, 0x%x
    s_cmp_eq_u32 s10, 1
    v_exp_f32 v14, v14
    s_cselect_b32 s12, 0x%x, s12
    s_cselect_b32 s13, 2.0, 1.0
    v_cvt_pk_bf16_f32 v14, v14, v14
    v_and_b32 v14, 0xffff0000, v14
    v_mul_f32 v16, s12, v14
    v_mul_f32 v17, 0x%x, v14
    v_mul_f32 v20, s13, v14
    v_mul_f32 v18, 0x41000000, v16
    v_mul_f32 v19, 0x41000000, v17
    s_mov_b32 s78, 0
    ''' % (LOG2E, LOG2E, LOG2E | 0x80000000, INV2PI))

    a.label('KG_LOOP')
    a('''
    s_cmp_eq_u32 s10, 1
    s_cbranch_scc1 KG_B
    ''')
    cmul(4, 4, 6)
    a('s_branch KG_C')
    a.label('KG_B')
    a('''
    v_mul_f32 v2, 0x%x, v2
    v_exp_f32 v2, v2
    s_nop 0
    v_cvt_pk_bf16_f32 v2, v2, v2
    v_and_b32 v2, 0xffff0000, v2
    ''' % LOG2E)
    a.label('KG_C')
    a('''
    v_pk_mul_f32 v[24:25], v[2:3], v[18:19]
    v_pk_mul_f32 v[22:23], v[2:3], v[16:17]
    v_pk_mul_f32 v[30:31], v[4:5], v[20:21] op_sel_hi:[1,0]
    v_fract_f32 v25, v25
    v_exp_f32 v26, v24
    v_fract_f32 v23, v23
    v_cos_f32 v24, v25
    v_sin_f32 v25, v25
    v_exp_f32 v28, v22
    v_pk_mul_f32 v[24:25], v[24:25], v[26:27] op_sel_hi:[1,0]
    v_cos_f32 v22, v23
    v_sin_f32 v23, v23
    s_mov_b32 m0, s76
    v_pk_mul_f32 v[22:23], v[22:23], v[28:29] op_sel_hi:[1,0]
    ''')
    cv = [0]
    hi = [False]
    def emit(row, x, neg):
        t = 40 + cv[0] % 4; cv[0] += 1
        a('v_cvt_pk_bf16_f32 v%d, v%d, %sv%d' % (t, x, '-' if neg else '', x + 1))
        off = row * PITCH - (M0HI if hi[0] else 0)
        assert 0 <= off < 65536
        a('ds_write_addtid_b32 v%d offset:%d' % (t, off))
    emit(1, 24, False)
    for k in range(2, 33):
        if k == 16:
            a('s_mov_b32 m0, s77'); hi[0] = True
        cmul(26, 24 if k == 2 else 26, 24)
        if k < 32: emit(k, 26, False)
    for s in range(8): a('ds_read_b128 %s, v44 offset:%d' % (vr(64 + 4 * s, 4), 32 * s))
    a('''
    s_cmp_eq_u32 s78, 0
    s_cbranch_scc1 KG_NOPART
    s_lshl_b32 s13, s9, 2
    s_add_u32 s13, s13, 3
    s_add_u32 s14, s9, 8
    s_cmp_eq_u32 s10, 1
    s_cselect_b32 s13, s13, s14
    s_lshl_b32 s14, 1, s13
    s_lshl_b32 s13, s13, 8
    v_add_u32 v21, s13, v45
    ''')
    wait_flags('s14', '1', 46, 28)
    for q in range(4): a('ds_read_b128 %s, v21 offset:%d' % (vr(128 + 4 * q, 4), 4 * q * PITCH))
    a.label('KG_NOPART')
    a('s_mov_b32 m0, s76'); hi[0] = False
    emit(1, 30, True)
    rows0 = [8, 9, 10, 11, 16, 17, 18, 19]
    cur = 30
    for r in range(1, 9):
        dst = 30 if r % 2 else 32 + (r - 2)
        cmul(dst, cur, 22)
        cur = dst
        emit(rows0[r - 1], cur, True)
    a('s_mov_b32 m0, s77'); hi[0] = True
    for reg, row in ((32, 13), (34, 14), (36, 21), (38, 23), (34, 24), (38, 25), (34, 28), (38, 29), (38, 26), (38, 30), (38, 27), (38, 31)):
        cmul(reg, reg, 26)
        emit(row, reg, True)
    for s in range(8): a('ds_read_b128 %s, v44 offset:%d' % (vr(96 + 4 * s, 4), 32 * s))
    a('''
    s_cmp_eq_u32 s78, 0
    s_cbranch_scc1 KG_NOADD
    s_waitcnt lgkmcnt(8)
    ''')
    for q in (0, 2, 3, 4, 5, 6, 7):
        a('v_pk_add_f32 %s, %s, %s' % (vr(48 + 2 * q, 2), vr(48 + 2 * q, 2), vr(128 + 2 * q, 2)))
    a.label('KG_NOADD')
    for i in range(6): a('v_mov_b32 v%d, v%d' % (2 + i, 8 + i))
    for s in range(8):
        a('s_waitcnt lgkmcnt(%d)' % (7 - s))
        a('v_mfma_f32_32x32x16_bf16 v[48:63], %s, %s, v[48:63]' % (vr(96 + 4 * s, 4), vr(64 + 4 * s, 4)))
    a('''
    s_cmp_eq_u32 s11, 1
    s_cbranch_scc1 ONEW
    s_add_u32 s78, s78, 1
    s_cmp_eq_u32 s78, 1
    s_cbranch_scc1 KG_LOOP
    ''')
    stamp(3)
    a('''
    s_lshl_b32 s13, s9, 1
    s_add_u32 s13, s13, s10
    s_mul_i32 s14, s13, %d
    s_add_u32 s14, s14, %d
    v_lshl_add_u32 v2, v0, 5, s14
    s_mul_i32 s14, s13, %d
    s_add_u32 s14, s14, %d
    v_lshl_add_u32 v3, v0, 2, s14
    s_mul_i32 s14, s13, %d
    s_add_u32 s14, s14, %d
    v_lshl_add_u32 v4, v0, 1, s14
    s_nop 1
    v_add_f32 v51, v49, v15
    s_mov_b32 exec_lo, 0
    v_mov_b32 v55, v54
    v_mov_b32 v56, v54
    v_mov_b32 v58, v59
    s_mov_b32 exec_lo, -1
    v_mov_b32_dpp v51, v59 wave_shr:1 row_mask:0xf bank_mask:0xf
    v_cvt_pk_bf16_f32 v6, v60, v61
    v_cvt_pk_bf16_f32 v7, v62, v63
    v_mov_b32_dpp v52, v59 wave_shr:1 row_mask:0xc bank_mask:0xf
    ds_write_b32 v3, v6
    ds_write_b16 v4, v7
    ds_write_b16_d16_hi v4, v7 offset:128
    ''' % (PTSZ, PT0 + 64, Q2SZ, Q20 + 128, Q3SZ, Q30 + 64))
    for e in range(8): a('v_cvt_pk_bf16_f32 v%d, v%d, v%d' % (8 + e, 52 + e, 51 + e))
    a('''
    ds_write_b128 v2, v[8:11]
    ds_write_b128 v2, v[12:15] offset:16
    v_cvt_pk_bf16_f32 v6, v51, 0
    v_mov_b32 v16, v15
    v_mov_b32 v17, v15
    v_and_b32 v18, 0xffff0000, v15
    v_mov_b32 v19, 0
    v_add_u32 v5, -4, v2
    s_mov_b64 exec, 1
    ds_write_b32 v5, v6
    s_mov_b32 exec_lo, 0
    s_brev_b32 exec_hi, 1
    ds_write_b128 v2, v[16:19] offset:32
    s_mov_b64 exec, -1
    ''')
    set_flag('1', 6)
    a('''
    v_and_b32 v8, 15, v0
    v_lshrrev_b32 v9, 4, v0
    s_mul_i32 s13, s9, %d
    s_lshl_b32 s14, s8, 7
    s_add_u32 s13, s13, s14
    s_add_u32 s13, s13, %d
    v_lshlrev_b32 v10, 3, v9
    v_sub_u32 v10, v8, v10
    v_lshl_add_u32 v10, v10, 2, s13
    v_add_u32 v11, 1024, v10
    v_add_u32 v12, 2048, v10
    v_add_u32 v13, %d, v10
    v_add_u32 v14, %d, v10
    v_add_u32 v15, %d, v10
    s_mul_i32 s13, s9, %d
    s_lshl_b32 s14, s8, 6
    s_sub_u32 s13, s13, s14
    s_add_u32 s13, s13, %d
    v_lshl_add_u32 v2, v8, 5, s13
    v_lshl_add_u32 v2, v9, 4, v2
    s_lshl_b32 s13, s9, 2
    v_add_u32 v3, s13, v8
    v_and_b32 v3, 15, v3
    v_mul_u32_u24 v4, %d, v9
    v_lshl_add_u32 v3, v3, 4, v4
    v_add_u32 v3, s76, v3
    s_xor_b32 s14, s3, 4
    s_lshl_b32 s14, 1, s14
    ''' % (2 * PTSZ, PT0 + 100, PTSZ, PTSZ + 1024, PTSZ + 2048, USZ, U0 + 96, PITCH))
    AF, A1, A2 = 24, 32, 40
    for i in range(A1, A2 + 8):
        if i < 44: a('v_mov_b32 v%d, 0' % i)
    A2B = 16
    for i in range(16, 20): a('v_mov_b32 v%d, 0' % i)
    wait_flags('s14', '1', 46, 6)
    KF = lambda ssm, f: 64 + 36 * ssm + 4 * f
    UF = lambda f: 136 + 4 * f
    def kread(ssm, f):
        base = 10 + 3 * ssm + f // 4
        o = 64 * (f % 4)
        a('ds_read2_b32 %s, v%d offset0:%d offset1:%d' % (vr(KF(ssm, f), 2), base, o + 6, o + 4))
        a('ds_read2_b32 %s, v%d offset0:%d offset1:%d' % (vr(KF(ssm, f) + 2, 2), base, o + 2, o))
    for f in range(8):
        kread(0, f); kread(1, f)
    a('s_cmp_eq_u32 s8, 1')
    a('s_cbranch_scc1 NOF8')
    kread(0, 8); kread(1, 8)
    a.label('NOF8')
    wait_flags('0xf88', '9', 46, 6)
    stamp(4)
    for f in range(4): a('ds_read_b128 %s, v2 offset:%d' % (vr(UF(f), 4), 384 - 128 * f))
    a('''
    v_mov_b32 v5, 8
    s_mov_b32 s78, 0
    s_waitcnt lgkmcnt(0)
    ''')
    def mf(d, x, y, c):
        a('v_mfma_f32_16x16x32_bf16 %s, %s, %s, %s' % (vr(d, 4), vr(x, 4), vr(y, 4), vr(c, 4) if c is not None else '0'))
    a.label('DENSE')
    for f in range(4):
        a('s_waitcnt lgkmcnt(%d)' % [5, 4, 3, 0][f])
        mf(AF, KF(0, f), UF(f), A1 if f == 0 else AF)
        mf(AF + 4, KF(1, f), UF(f), A1 + 4 if f == 0 else AF + 4)
    a('''
    s_cmp_eq_u32 s78, 7
    s_cbranch_scc1 DENSE_LAST
    ''')
    for f in range(4):
        mf(A1, KF(0, f + 4), UF(f), A2 if f == 0 else A1)
        mf(A1 + 4, KF(1, f + 4), UF(f), A2B if f == 0 else A1 + 4)
        if f == 0:
            a('s_cmp_eq_u32 s8, 1')
            a('s_cbranch_scc1 DENSE_Y')
            mf(A2, KF(0, 8), UF(0), None)
            mf(A2B, KF(1, 8), UF(0), None)
            a.label('DENSE_Y')
        if f == 3:
            for r in range(4): a('v_cvt_pk_bf16_f32 v%d, v%d, v%d' % (20 + r, AF + r, AF + 4 + r))
            a('ds_write_b128 v3, v[20:23]')
            a('ds_write_b32 v47, v5')
        a('ds_read_b128 %s, v2 offset:%d' % (vr(UF(f), 4), 512 + 384 - 128 * f))
    a('''
    v_add_u32 v2, 512, v2
    v_add_u32 v3, %d, v3
    v_add_u32 v5, 1, v5
    s_add_u32 s78, s78, 1
    s_branch DENSE
    DENSE_LAST:
    s_nop 5
    ''' % (4 * PITCH))
    for r in range(4): a('v_cvt_pk_bf16_f32 v%d, v%d, v%d' % (20 + r, AF + r, AF + 4 + r))
    a('ds_write_b128 v3, v[20:23]')
    a('ds_write_b32 v47, v5')
    stamp(5)
    a('s_branch FIN')

    a.label('ONEW')
    a('''
    v_add_u32 v21, s76, v45
    s_and_b32 s12, s6, 1
    s_mov_b32 s13, 0x05040100
    s_cmp_eq_u32 s12, 1
    s_cselect_b32 s13, 0x07060302, s13
    s_nop 4
    ''')
    for q in range(4): a('ds_write_b128 v21, %s offset:%d' % (vr(48 + 4 * q, 4), 4 * q * PITCH))
    set_flag('1', 6)
    stamp(3)
    for k in range(3):
        r = 128 + 4 * k
        if k == 2:
            a('s_cmp_ge_u32 s79, 4')
            a('s_cbranch_scc1 PACKED')
        a('s_waitcnt vmcnt(%d)' % (4 - 2 * k))
        a('v_perm_b32 v2, v%d, v%d, s13' % (r + 2, r))
        a('v_perm_b32 v4, v%d, v%d, s13' % (r + 3, r + 1))
        a('v_alignbit_b32 v%d, v%d, v%d, 16' % (r, r + 1, r))
        a('v_alignbit_b32 v%d, v%d, v%d, 16' % (r + 2, r + 3, r + 2))
        a('ds_write_b32 v%d, v2' % (140 + k))
        a('v_perm_b32 v3, v%d, v%d, s13' % (r + 2, r))
        a('ds_write_b32 v%d, v4 offset:%d' % (140 + k, 2 * USZ))
        a('ds_write_b32 v%d, v3 offset:%d' % (140 + k, USZ))
    a.label('PACKED')
    set_flag('9', 6)
    stamp(4)
    a('''
    s_cmp_lg_u32 s7, 3
    s_cbranch_scc1 HELPER
    ''')
    B3, B5, B7, B9, BS = 144, 148, 152, 156, 160
    S2 = lambda kap, half: 64 + 8 * kap + 4 * half
    S3 = lambda kap: 112 + 4 * kap
    k2regs = list(range(8, 44, 4)) + [128, 132, 136]
    K2 = lambda ssm, dl, half: k2regs[(ssm * 3 + dl) * 2 + half]
    K3 = lambda ssm, dl: [144, 152, 64, 72][dl] + 4 * ssm
    KS = lambda ssm: 56 + 4 * ssm
    TA = 48
    UA = 140
    CV = 164
    a('''
    v_and_b32 v6, 15, v0
    v_lshrrev_b32 v7, 4, v0
    s_mul_i32 s13, s9, %d
    s_add_u32 s13, s13, %d
    v_lshl_add_u32 v2, v6, 5, s13
    v_lshl_add_u32 v2, v7, 4, v2
    s_lshl_b32 s13, s9, 10
    s_add_u32 s13, s13, %d
    v_lshl_add_u32 v3, v6, 3, s13
    v_lshlrev_b32 v4, 5, v7
    v_sub_u32 v3, v3, v4
    s_mul_i32 s13, s9, %d
    s_add_u32 s13, s13, %d
    v_lshlrev_b32 v4, 2, v7
    v_sub_u32 v4, v6, v4
    v_lshl_add_u32 v4, v4, 2, s13
    s_lshl_b32 s13, s9, 2
    v_add_u32 v5, s13, v6
    v_and_b32 v5, 15, v5
    v_mul_u32_u24 v7, %d, v7
    v_lshl_add_u32 v5, v5, 4, v7
    s_add_u32 s13, s76, %d
    v_add_u32 v5, s13, v5
    s_lshl_b32 s13, s9, 10
    s_add_u32 s13, s13, %d
    v_mov_b32 v7, s13
    ''' % (USZ, U0 + 512 - 48, Q20 + 104, 2 * Q3SZ, Q30 + 52, PITCH, 8 * PITCH, Q20 + 128 + 254))
    wait_flags('0xf88', '9', 46, 6)
    DT = [24, 28, 32, 36, 40, 128]
    def uread(kap):
        b = 8 + 8 * (kap % 2)
        a('ds_read_b128 %s, v2 offset:%d' % (vr(b, 4), 512 * kap + 16))
        a('ds_read_b128 %s, v2 offset:%d' % (vr(b + 4, 4), 512 * kap))
    uread(0)
    for kap in range(6):
        if kap < 5: uread(kap + 1)
        b = 8 + 8 * (kap % 2)
        a('s_waitcnt lgkmcnt(%d)' % (2 if kap < 5 else 0))
        mf(DT[0], b, B3, None); mf(DT[1], b, B5, None); mf(DT[2], b + 4, B3, None); mf(DT[3], b + 4, B5, None)
        if kap < 4:
            mf(DT[4], b, B7, None); mf(DT[5], b + 4, B9, None)
            a('s_nop 3')
        else:
            a('s_nop 5')
        for half, r0 in ((0, 2), (1, 0)):
            a('v_cvt_pk_bf16_f32 v%d, v%d, v%d' % (S2(kap, half), DT[0] + r0 + 1, DT[1] + r0 + 1))
            a('v_cvt_pk_bf16_f32 v%d, v%d, v%d' % (S2(kap, half) + 2, DT[0] + r0, DT[1] + r0))
        for half, r0 in ((0, 2), (1, 0)):
            a('v_cvt_pk_bf16_f32 v%d, v%d, v%d' % (S2(kap, half) + 1, DT[2] + r0 + 1, DT[3] + r0 + 1))
            a('v_cvt_pk_bf16_f32 v%d, v%d, v%d' % (S2(kap, half) + 3, DT[2] + r0, DT[3] + r0))
        if kap < 4:
            for d in range(4): a('v_cvt_pk_bf16_f32 v%d, v%d, v%d' % (S3(kap) + d, DT[4] + 3 - d, DT[5] + 3 - d))
    stamp(5)
    a('''
    s_lshl_b32 s14, 0x11, s9
    ''')
    wait_flags('s14', '1', 46, 6)
    stamp(6)
    def k2read(ssm, dl):
        for half in range(2):
            for p in range(2):
                a('ds_read_b64 %s, v3 offset:%d' % (vr(K2(ssm, dl, half) + 2 * p, 2), ssm * Q2SZ + 128 * dl + 16 * half + 8 * p))
    def k3read(ssm, dl):
        o = ssm * (Q3SZ // 4) + 16 * dl
        a('ds_read2_b32 %s, v4 offset0:%d offset1:%d' % (vr(K3(ssm, dl), 2), o, o + 1))
        a('ds_read2_b32 %s, v4 offset0:%d offset1:%d' % (vr(K3(ssm, dl) + 2, 2), o + 2, o + 3))
    k2read(0, 0); k2read(1, 0)
    for P in range(2, 8):
        a('s_waitcnt lgkmcnt(0)')
        if P == 2: k2read(0, 1); k2read(1, 1)
        if P == 3:
            k2read(0, 2); k2read(1, 2); k3read(0, 0); k3read(1, 0)
            a('ds_read_u16 v%d, v7' % (CV))
            a('ds_read_u16 v%d, v7 offset:%d' % (CV + 1, Q2SZ))
        if P == 4: k3read(0, 1); k3read(1, 1)
        if P == 5: k3read(0, 2); k3read(1, 2)
        if P == 6: k3read(0, 3); k3read(1, 3)
        first = [True, True]
        def acc(ssm, x, y):
            mf(TA + 4 * ssm, x, y, None if first[ssm] else TA + 4 * ssm); first[ssm] = False
        if P >= 4:
            for ssm in range(2): acc(ssm, KS(ssm), UA)
        if 3 <= P <= 6: a('ds_read_b128 %s, v2 offset:%d' % (vr(UA, 4), 512 * (P - 3) + 16))
        for dl in range(3):
            kap = P - 2 - dl
            if kap < 0: continue
            for half in range(2):
                for ssm in range(2): acc(ssm, S2(kap, half), K2(ssm, dl, half))
        for dl in range(4):
            kap = P - 4 - dl
            if kap < 0: continue
            for ssm in range(2): acc(ssm, S3(kap), K3(ssm, dl))
        if P == 3:
            a('s_waitcnt lgkmcnt(1)')
            for ssm in range(2):
                for d in range(4): a('v_mul_u32_u24 v%d, v%d, v%d' % (KS(ssm) + d, BS + d, CV + ssm))
        else:
            a('s_nop 6')
        a('v_mov_b32 v6, %d' % (8 + P))
        for r in range(4): a('v_cvt_pk_bf16_f32 v%d, v%d, v%d' % (CV + r, TA + r, TA + 4 + r))
        a('ds_write_b128 v5, %s offset:%d' % (vr(CV, 4), 4 * PITCH * (P - 2)))
        a('ds_write_b32 v47, v6')
    stamp(7)
    a('s_branch FIN')

    a.label('HELPER')
    a('''
    v_and_b32 v2, 31, v0
    v_lshlrev_b32 v2, 2, v2
    v_lshrrev_b32 v3, 4, v0
    v_mul_u32_u24 v3, 768, v3
    v_and_b32 v4, 15, v0
    v_lshl_add_u32 v3, v4, 4, v3
    s_lshl_b32 s13, s7, 8
    v_add_u32 v3, s13, v3
    v_add_u32 v4, 3072, v3
    v_add_u32 v5, 6144, v3
    s_mul_i32 s13, s7, %d
    s_add_u32 s13, s13, %d
    v_lshl_add_u32 v6, v0, 4, s13
    s_mov_b32 s1, 0
    GPOLL:
    s_add_u32 s1, s1, 1
    s_cmp_gt_u32 s1, 0x4000
    s_cbranch_scc1 GREADY
    global_load_dword v8, v2, s[52:53] sc0 sc1
    s_waitcnt vmcnt(0)
    v_cmp_eq_u32 vcc, 0, v8
    s_cbranch_vccz GREADY
    s_sleep 2
    s_branch GPOLL
    GREADY:
    global_load_dwordx4 v[8:11], v3, s[54:55] sc0 sc1
    global_load_dwordx4 v[12:15], v4, s[54:55] sc0 sc1
    global_load_dwordx4 v[16:19], v5, s[54:55] sc0 sc1
    v_lshrrev_b32 v20, 2, v0
    v_and_b32 v21, 3, v0
    v_lshl_add_u32 v22, v21, 2, v20
    v_and_b32 v22, 15, v22
    v_lshlrev_b32 v22, 4, v22
    s_mul_i32 s14, s7, %d
    v_add_u32 v22, s14, v22
    v_lshl_add_u32 v23, v21, 10, v22
    v_add_u32 v23, 768, v23
    v_lshl_add_u32 v22, v21, 8, v22
    v_lshl_add_u32 v24, v20, 4, s13
    v_mul_u32_u24 v25, 20480, v20
    v_add_u32 v26, s6, v21
    v_lshl_add_u32 v25, v26, 1, v25
    v_lshl_add_u32 v26, v21, 2, 3
    v_and_b32 v27, 7, v0
    v_cmp_gt_u32 vcc, 8, v0
    s_nop 1
    v_cndmask_b32 v26, v26, v27, vcc
    v_lshlrev_b32 v26, 2, v26
    v_add_u32 v26, %d, v26
    s_waitcnt vmcnt(0)
    ds_write_b128 v6, v[8:11]
    ds_write_b128 v6, v[12:15] offset:1024
    ds_write_b128 v6, v[16:19] offset:2048
    s_mov_b32 exec_lo, 0x77777777
    s_mov_b32 exec_hi, 0x77777777
    s_mov_b32 s78, s7
    ''' % (GWSZ, GW0, PITCH, FL))
    stamp(5)
    a.label('HLOOP')
    a('''
    s_lshr_b32 s13, s78, 2
    s_add_u32 s14, s13, 8
    s_lshl_b32 s13, s13, 6
    s_and_b32 s15, s78, 3
    s_add_u32 s13, s13, s15
    s_mul_i32 s13, s13, 5120
    ''')
    wait_flags('0x777', 's14', 26, 28)
    a('''
    ds_read_b128 v[8:11], v24
    ds_read_b128 v[12:15], v22
    ds_read_b128 v[16:19], v22 offset:1024
    ds_read_b128 v[32:35], v23
    v_add_u32 v22, %d, v22
    v_add_u32 v23, %d, v23
    v_add_u32 v24, 256, v24
    s_waitcnt lgkmcnt(2)
    ''' % (3 * PITCH, 3 * PITCH))
    for r in range(4): a('v_dot2_f32_bf16 v%d, v%d, v%d, 0' % (28 + r, 12 + r, 8 + r))
    a('s_waitcnt lgkmcnt(1)')
    for r in range(4): a('v_dot2_f32_bf16 v%d, v%d, v%d, v%d' % (28 + r, 16 + r, 8 + r, 28 + r))
    a('''
    s_waitcnt lgkmcnt(0)
    s_cmp_lt_u32 s78, 8
    s_cbranch_scc1 HNOT
    ''')
    for r in range(4): a('v_dot2_f32_bf16 v%d, v%d, v%d, v%d' % (28 + r, 32 + r, 8 + r, 28 + r))
    a('''
    s_nop 0
    HNOT:
    s_add_u32 s78, s78, 3
    v_cvt_pk_bf16_f32 v36, v28, v29
    v_cvt_pk_bf16_f32 v37, v30, v31
    buffer_store_short v36, v25, s[60:63], s13 offen
    buffer_store_short_d16_hi v36, v25, s[60:63], s13 offen offset:1280
    buffer_store_short v37, v25, s[60:63], s13 offen offset:2560
    buffer_store_short_d16_hi v37, v25, s[60:63], s13 offen offset:3840
    s_cmp_lt_u32 s78, 32
    s_cbranch_scc1 HLOOP
    ''')
    stamp(6)
    if stamps:
        a('s_waitcnt vmcnt(0)')
        stamp(7)
        a('s_mov_b64 exec, -1')
    a('s_branch FIN')

    a.label('PRODUCER')
    a('''
    s_cmp_ge_u32 s3, 8
    s_cbranch_scc1 END
    v_lshrrev_b32 v1, 3, v0
    s_lshl_b32 s4, s3, 3
    v_add_u32 v1, s4, v1
    v_lshrrev_b32 v2, 2, v1
    v_and_b32 v3, 3, v1
    v_lshl_add_u32 v2, v2, 4, v3
    s_lshr_b32 s4, s2, 2
    s_lshl_b32 s4, s4, 6
    s_and_b32 s5, s2, 3
    s_add_u32 s4, s4, s5
    s_lshl_b32 s4, s4, 2
    v_add_u32 v2, s4, v2
    v_mul_u32_u24 v2, 1280, v2
    v_and_b32 v3, 7, v0
    v_lshlrev_b32 v3, 4, v3
    v_add_u32 v2, v2, v3
    s_lshl_b32 s4, s2, 8
    v_lshl_add_u32 v1, v1, 2, s4
    s_waitcnt lgkmcnt(0)
    ''')
    for i in range(10):
        a('global_load_dwordx4 %s, v2, s[16:17] offset:%d' % (vr(8 + 4 * i, 4), 128 * i))
    for i in range(10):
        a('global_load_dwordx4 %s, v3, s[48:49] offset:%d' % (vr(48 + 4 * i, 4), 128 * i))
    for i in range(10):
        a('s_waitcnt vmcnt(%d)' % (9 - i))
        for d in range(4):
            a('v_dot2_f32_bf16 v%d, v%d, v%d, %s' % (4 + d, 8 + 4 * i + d, 48 + 4 * i + d, '0' if i == 0 else 'v%d' % (4 + d)))
    stamp(2)
    a('''
    s_nop 2
    v_add_f32 v4, v4, v5
    v_add_f32 v6, v6, v7
    v_add_f32 v4, v4, v6
    s_nop 1
    v_add_f32_dpp v4, v4, v4 quad_perm:[1,0,3,2] row_mask:0xf bank_mask:0xf
    s_nop 1
    v_add_f32_dpp v4, v4, v4 quad_perm:[2,3,0,1] row_mask:0xf bank_mask:0xf
    s_nop 1
    v_add_f32_dpp v4, v4, v4 row_half_mirror row_mask:0xf bank_mask:0xf
    v_cvt_pk_bf16_f32 v4, v4, v4
    v_and_b32 v4, 0xffff0000, v4
    v_mul_f32 v4, 0x%x, v4
    v_exp_f32 v4, v4
    s_nop 0
    v_add_f32 v4, 1.0, v4
    v_rcp_f32 v4, v4
    s_nop 0
    v_cvt_pk_bf16_f32 v4, v4, v4
    v_and_b32 v5, 0xffff0000, v4
    v_sub_f32 v6, 1.0, v5
    v_cvt_pk_bf16_f32 v4, v5, v6
    s_mov_b32 exec_lo, 0x01010101
    s_mov_b32 exec_hi, 0x01010101
    global_store_dword v1, v4, s[54:55] sc0 sc1
    s_waitcnt vmcnt(0)
    s_barrier
    s_cmp_lg_u32 s3, 0
    s_cbranch_scc1 PDONE
    s_lshl_b32 s4, s2, 2
    v_mov_b32 v1, s4
    v_mov_b32 v4, 1
    s_mov_b64 exec, 1
    global_store_dword v1, v4, s[52:53] sc0 sc1
    PDONE:
    ''' % (LOG2E | 0x80000000))
    if stamps:
        a('s_waitcnt vmcnt(0)')
        stamp(3)
        a('s_mov_b64 exec, -1')
    a.label('FIN')
    if stamps:
        a('s_waitcnt lgkmcnt(0)')
        for k in range(8): a('v_mov_b32 v%d, s%d' % (8 + k, 80 + 2 * k))
        a('''
        s_mul_i32 s12, s2, 12
        s_add_u32 s12, s12, s3
        s_lshl_b32 s12, s12, 5
        s_add_u32 s12, s12, 65536
        v_mov_b32 v1, s12
        s_mov_b64 exec, 1
        global_store_dwordx4 v1, v[8:11], s[54:55]
        global_store_dwordx4 v1, v[12:15], s[54:55] offset:16
        ''')
    a.label('END')
    a('s_endpgm')
    return a

def wrap(a):
    hdr = open('gated_mix__ssm_conv_s4__ssm_conv_s4d__prompt.s.ref').read().split('; @launch')[0]
    s = hdr + '; @launch grid=(256,1,1) block=(768,1,1) lds=%d\n' % LDS_TOTAL
    s += '.amdgcn_target "amdgcn-amd-amdhsa--gfx950"\n.text\n.globl %s\n.p2align 8\n.type %s,@function\n%s:\n' % (NAME, NAME, NAME)
    s += a.text()
    s += '''.section .rodata,"a"
.p2align 6
.amdhsa_kernel %s
  .amdhsa_next_free_vgpr 168
  .amdhsa_next_free_sgpr 96
  .amdhsa_accum_offset 168
  .amdhsa_group_segment_fixed_size 0
  .amdhsa_kernarg_size 160
  .amdhsa_user_sgpr_count 2
  .amdhsa_user_sgpr_kernarg_segment_ptr 1
  .amdhsa_system_sgpr_workgroup_id_x 1
.end_amdhsa_kernel
''' % NAME
    return s

if __name__ == '__main__':
    out = sys.argv[1]
    a = gen(stamps='--stamps' in sys.argv)
    bad = check(a.lines)
    for b in bad: print('HAZARD', b)
    open(out, 'w').write(wrap(a))
    print('written', out, len(a.lines), 'lines')
```

```python
import sys
sys.path.insert(0, 'gen')
from asmlib import *

NAME = 'gated_mix__ssm_conv_s4__ssm_conv_s4d__prompt_kernel'
PITCH = 3104
U0 = 99328; USZ = 4608
TB0 = 113152; TBSZ = 3072
Q2O = 2256; Q3O = 2704
FL = 131584
G0 = 131648
BD0 = G0 + 8192
LDS_TOTAL = BD0 + 4096
M0HI = 11 * PITCH
LOG2E = 0x3fb8aa3b
INV2PI = 0x3e22f983
CMUL1 = 'op_sel_hi:[1,0]'
CMUL2 = 'op_sel:[1,1,0] op_sel_hi:[0,1,1] neg_lo:[1,0,0]'
CMUL2C = 'op_sel:[1,1,0] op_sel_hi:[0,1,1] neg_hi:[1,0,0]'
BROW = {260: 8, 1288: 16, 516: 1, 1: 9, 5: 17, 520: 2, 2: 10, 6: 18, 772: 3, 3: 11, 7: 19, 776: 4, 262: 12, 8: 20,
        0: 5, 4: 13, 258: 21, 1032: 6, 256: 14, 264: 22, 1800: 7, 1544: 15}
TA_ROWS = [1, 2, 3, 4, 5, 6, 7, 8, 256, 258, 260, 260, 260, 262, 264, 264]
TB_ROWS = [0, 516, 520, 1032, 4, 772, 776, 1288, 256, 516, 520, 1544, 260, 772, 776, 1800]
TAILB = ((0, 256), (2, 258), (4, 260), (6, 262), (8, 264), (4, 516), (8, 520), (4, 772), (8, 776), (8, 1032), (8, 1288), (8, 1544), (8, 1800))
HDROP = '''
    s_bitcmp0_b32 0x300, s3
    s_cbranch_scc1 PRIOM
    s_setprio 0
    PRIOM:
    '''
class DS:
    def __init__(self, a): self.a = a; self.q = []
    opt = False
    def op(self, text, tag=None):
        self.a(text); self.q.append((tag, self.opt))
    def need(self, *tags):
        idx = [i for i, t in enumerate(self.q) if t[0] in tags]
        if not idx: return
        rest = self.q[max(idx) + 1:]
        n = min(15, sum(1 for t in rest if not t[1]))
        self.a('s_waitcnt lgkmcnt(%d)' % n)
        if not self.opt: self.q = rest
    def drained(self): self.q = []

def gen(stamps=None, opt=None):
    opt = opt or {}
    BOUND = opt.get('bound', 1)
    a = Asm()
    def kstamp(k):
        if stamps and opt.get('kgprof', 0): a('%s s[%d:%d]' % (stamps, 80 + 2 * k, 81 + 2 * k))
    def cstamp(k):
        if stamps and opt.get('cprof', 0): a('%s s[%d:%d]' % (stamps, 80 + 2 * k, 81 + 2 * k))
    def stamp(k):
        if (opt.get('kgprof', 0) or opt.get('cprof', 0)) and k != 0: return
        if stamps: a('%s s[%d:%d]' % (stamps, 80 + 2 * k, 81 + 2 * k))
    def cmul(dst, x, m, t=28):
        a('v_pk_mul_f32 %s, %s, %s %s' % (vr(t, 2), vr(x, 2), vr(m, 2), CMUL1))
        a('v_pk_fma_f32 %s, %s, %s, %s %s' % (vr(dst, 2), vr(x, 2), vr(m, 2), vr(t, 2), CMUL2))
    def hmul(dst, x, m, conj):
        a('v_pk_mul_f16 v28, v%d, v%d %s' % (x, m, CMUL1))
        a('v_pk_fma_f16 v%d, v%d, v%d, v28 %s' % (dst, x, m, CMUL2C if conj else CMUL2))
    def wait_flags(mask, thr, vaddr, vt, sleep=1):
        L = a.newlabel('POLL')
        if BOUND: a('s_mov_b32 s1, 0')
        a.label(L)
        a('ds_read_b32 %s, %s' % (vr(vt), vr(vaddr)))
        a('s_waitcnt lgkmcnt(0)')
        a('v_cmp_le_u32 vcc, %s, %s' % (thr, vr(vt)))
        a('s_andn2_b32 s12, %s, vcc_lo' % mask)
        a('s_cbranch_scc0 %s_X' % L)
        if sleep: a('s_sleep %d' % sleep)
        if BOUND:
            a('s_add_u32 s1, s1, 1')
            a('s_cmp_lt_u32 s1, 0x8000')
            a('s_cbranch_scc1 %s' % L)
        else:
            a('s_branch %s' % L)
        a.label(L + '_X')
    def set_flag(val, vt):
        a('v_mov_b32 %s, %s' % (vr(vt), val))
        a('ds_write_b32 v47, %s' % vr(vt))
    def mf(d, x, y, c):
        a('v_mfma_f32_16x16x32_bf16 %s, %s, %s, %s' % (vr(d, 4), vr(x, 4), vr(y, 4), vr(c, 4) if c is not None else '0'))
    hi = [1]
    def wrow(row, t):
        off = (row - hi[0]) * PITCH
        assert 0 <= off < 65536
        a('ds_write_addtid_b32 v%d offset:%d' % (t, off))
    def m0(h):
        a('s_add_u32 m0, s76, %d' % (h * PITCH)); hi[0] = h

    a('''
    s_load_dwordx16 s[16:31], s[0:1], 0
    s_load_dwordx16 s[32:47], s[0:1], 64
    s_load_dwordx8 s[48:55], s[0:1], 128
    ''')
    stamp(0)
    if stamps: a('s_memtime s[96:97]\n s_memrealtime s[98:99]')
    a('''
    s_cmp_ge_u32 s2, 256
    s_cbranch_scc1 END
    v_lshrrev_b32 v1, 6, v0
    v_and_b32 v0, 63, v0
    s_getpc_b64 s[4:5]
    PF_BASE:
    v_readfirstlane_b32 s3, v1
    ''')
    if opt.get('tlb', 0):
        a('''
        s_cmp_lg_u32 s3, %d
        s_cbranch_scc1 NOTLB
        v_min_u32 v2, 19, v0
        v_lshlrev_b32 v2, 3, v2
        global_load_dwordx2 v[2:3], v2, s[0:1]
        s_waitcnt vmcnt(0)
        global_load_dword v164, v[2:3], off offset:128
        NOTLB:
        ''' % (opt['tlb'] - 1))
    if opt.get('cpf', 1):
        a('''
        s_cmp_ge_u32 s3, 2
        s_cbranch_scc1 NOPF
        v_lshl_add_u32 v1, v1, 6, v0
        v_lshlrev_b32 v1, 7, v1
        v_min_u32 v1, KG_SLOW-PF_BASE, v1
        global_load_dword v165, v1, s[4:5]
        NOPF:
        ''')
    a('''
    s_cmp_lt_u32 s2, 32
    s_cbranch_scc1 PRODUCER
    s_and_b32 s4, s2, 7
    s_lshr_b32 s5, s2, 3
    s_sub_u32 s5, s5, 4
    s_cmp_ge_u32 s5, 11
    s_cselect_b32 s12, 1, 0
    s_cmp_ge_u32 s5, 22
    s_cselect_b32 s12, 2, s12
    s_cselect_b32 s13, 13, 29
    s_cselect_b32 s14, -64, 16
    s_mul_i32 s15, s12, 11
    s_sub_u32 s15, s5, s15
    s_mul_i32 s15, s15, 3
    s_min_u32 s15, s15, s13
    s_lshl_b32 s12, s12, 5
    s_add_u32 s15, s15, s12
    s_bitcmp1_b32 s4, 0
    s_cselect_b32 s14, s14, 0
    s_add_u32 s15, s15, s14
    s_mul_i32 s6, s4, 80
    s_add_u32 s6, s6, s15
    s_and_b32 s7, s3, 3
    s_cmp_eq_u32 s3, 10
    s_cbranch_scc1 LOADER
    s_lshl_b32 s12, s3, 1
    s_lshr_b32 s9, 0x2464a4, s12
    s_and_b32 s9, s9, 3
    s_lshr_b32 s11, 0xf88, s3
    s_and_b32 s11, s11, 1
    s_add_u32 s12, s6, s9
    s_lshl_b32 s13, s12, 1
    s_mul_i32 s12, s12, 384
    s_lshl_b32 s14, s11, 8
    s_add_u32 s12, s12, s14
    v_lshl_add_u32 v1, v0, 1, s12
    v_mov_b32 v46, s13
    ''')
    for i in list(range(2, 15)) + [166]: a('v_mov_b32 v%d, 0' % i)
    a('''
    s_lshr_b32 s10, 0xa70, s3
    s_and_b32 s10, s10, 1
    s_waitcnt lgkmcnt(0)
    s_cselect_b64 s[64:65], s[36:37], s[18:19]
    s_cselect_b64 s[66:67], s[38:39], s[20:21]
    s_cselect_b64 s[68:69], s[40:41], s[26:27]
    s_cselect_b64 s[70:71], s[42:43], s[28:29]
    s_cselect_b64 s[72:73], s[44:45], s[30:31]
    s_cselect_b64 s[74:75], s[46:47], s[32:33]
    global_load_short_d16_hi v14, v46, s[72:73]
    global_load_short_d16_hi v2, v1, s[64:65]
    global_load_short_d16_hi v3, v1, s[66:67]
    global_load_short_d16_hi v4, v1, s[68:69]
    global_load_short_d16_hi v5, v1, s[70:71]
    s_cbranch_scc1 NOB0
    global_load_short_d16_hi v6, v1, s[22:23]
    global_load_short_d16_hi v7, v1, s[24:25]
    NOB0:
    s_cmp_eq_u32 s11, 1
    s_cbranch_scc1 LOADT
    global_load_short_d16_hi v8, v1, s[64:65] offset:128
    global_load_short_d16_hi v9, v1, s[66:67] offset:128
    global_load_short_d16_hi v10, v1, s[68:69] offset:128
    global_load_short_d16_hi v11, v1, s[70:71] offset:128
    s_mov_b64 exec, 1
    global_load_short_d16_hi v166, v46, s[74:75]
    s_mov_b64 exec, -1
    s_cmp_eq_u32 s10, 1
    s_cbranch_scc1 LOADED
    global_load_short_d16_hi v12, v1, s[22:23] offset:128
    global_load_short_d16_hi v13, v1, s[24:25] offset:128
    s_branch LOADED
    LOADT:
    s_cmp_lg_u32 s3, 3
    s_cbranch_scc1 LOADED
    global_load_short_d16_hi v8, v1, s[36:37]
    global_load_short_d16_hi v9, v1, s[38:39]
    global_load_short_d16_hi v10, v1, s[40:41]
    global_load_short_d16_hi v11, v1, s[42:43]
    global_load_short_d16_hi v12, v46, s[44:45]
    LOADED:
    ''')
    stamp(6)
    a('''
    s_barrier
    s_branch WORKER
    ''')

    a.label('LOADER')
    a('''
    s_lshl_b32 s12, s5, 5
    v_lshrrev_b32 v3, 1, v0
    v_add_u32 v3, s12, v3
    v_mul_u32_u24 v3, 1280, v3
    v_and_b32 v4, 1, v0
    v_mul_u32_u24 v4, 156, v4
    s_mul_i32 s12, s4, 160
    v_add3_u32 v3, v3, v4, s12
    v_add_u32 v4, %d, v3
    v_add_u32 v5, %d, v3
    v_and_b32 v2, 15, v0
    v_lshlrev_b32 v2, 2, v2
    v_add_u32 v2, %d, v2
    v_mov_b32 v8, 0
    ds_write_b32 v2, v8
    s_lshl_b32 s9, s6, 1
    s_and_b32 s9, s9, -4
    v_mul_u32_u24 v1, 5120, v0
    v_add_u32 v1, s9, v1
    s_mov_b32 s4, 0
    s_setprio %d
    s_waitcnt lgkmcnt(0)
    s_mov_b32 s56, s16
    s_mov_b32 s57, s17
    s_mov_b32 s58, 2621440
    s_mov_b32 s59, 0x20000
    ''' % (896 * 1280, 1792 * 1280, FL, opt.get('lprio', 2)))
    pf = '''
    buffer_load_dword v80, v3, s[56:59], 0 offen
    '''
    pf2 = '''
    buffer_load_dword v81, v4, s[56:59], 0 offen
    buffer_load_dword v82, v5, s[56:59], 0 offen
    '''
    if opt.get('stage', 1) == 0: pf += pf2
    stamp(6)
    a('s_barrier')
    if opt.get('pfsleep', 20): a('s_sleep %d' % opt.get('pfsleep', 20))
    vq = []
    def vop(text, tag=None):
        a(text); vq.append(tag)
    def vneed(tag):
        n = len(vq) - 1 - max(i for i, t in enumerate(vq) if t == tag)
        a('s_waitcnt vmcnt(%d)' % n)
    def pfl(q): vop('buffer_load_dword v%d, v%d, s[56:59], 0 offen' % (60 + q, 3 + q))
    def uload(k):
        for q in range(4):
            vop('buffer_load_dwordx2 %s, v1, s[56:59], s4 offen offset:%d' % (vr(12 + 8 * (k % 2) + 2 * q, 2), 1280 * q), ('u', k))
        a('s_add_u32 s4, s4, %d' % (256 * 1280))
    ST = opt.get('stage', 0)
    if opt.get('touch', 1) == 2:
        a('v_lshlrev_b32 v6, 21, v0')
        a('s_mov_b64 exec, 3')
        a('global_load_dword v63, v6, s[50:51]')
        a('s_mov_b64 exec, -1')
        a('s_waitcnt vmcnt(0)')
    pfl(0)
    if ST == 0: pfl(1); pfl(2)
    stamp(1)
    uload(0)
    if ST == 1: pfl(1); pfl(2)
    uload(1)
    if ST == 2: pfl(1); pfl(2)
    if opt.get('touch', 1) == 1:
        a('v_lshlrev_b32 v6, 21, v0')
        a('s_mov_b64 exec, 3')
        vop('global_load_dword v63, v6, s[50:51]')
        a('s_mov_b64 exec, -1')
    a('''
    v_mov_b32 v9, 0
    v_mov_b32 v10, 0
    v_mov_b32 v11, 0
    v_lshrrev_b32 v2, 5, v0
    v_mul_u32_u24 v2, %d, v2
    v_and_b32 v3, 31, v0
    v_lshl_add_u32 v2, v3, 4, v2
    v_add_u32 v2, %d, v2
    ds_write_b128 v2, v[8:11]
    ds_write_b128 v2, v[8:11] offset:%d
    v_lshlrev_b32 v3, 2, v3
    v_lshlrev_b32 v2, 3, v0
    v_add_u32 v2, %d, v2
    v_mov_b32 v47, %d
    s_mov_b32 s13, 0x05040100
    s_mov_b32 s14, 0x07060302
    s_and_b32 s12, s6, 1
    s_mul_i32 s12, s12, RUSZ
    v_lshl_add_u32 v7, s12, 1, v2
    v_subrev_u32 v2, s12, v2
    v_lshlrev_b32 v4, 4, v0
    v_add_u32 v5, 4096, v4
    v_add_u32 v45, %d, v4
    '''.replace('RUSZ', str(USZ)) % (USZ, U0, USZ, U0 + 512, FL + 40, G0))
    def gloads(tag):
        for q in range(8): vop('global_load_dwordx4 %s, v%d, s[54:55] offset:%d sc0 sc1' % (vr(64 + 4 * q, 4), 4 + q // 4, 1024 * (q % 4)), tag)
    def gtest():
        a('v_max_u32 v6, v64, v65')
        for i in range(66, 96, 2): a('v_max3_u32 v6, v6, v%d, v%d' % (i, i + 1))
        a('v_cmp_eq_u32 vcc, -1, v6')
    def gcommit():
        for q in range(8): a('ds_write_b128 v45, %s offset:%d' % (vr(64 + 4 * q, 4), 1024 * q))
        a('v_mov_b32 v6, 9')
        a('ds_write_b32 v47, v6 offset:12')
    GK = opt.get('gk', 2)
    for k in range(8):
        r = 12 + 8 * (k % 2)
        vneed(('u', k))
        if opt.get('lprof', 0) and k in (0, 2): stamp({0: 2, 2: 4}[k])
        a('s_bitcmp1_b32 s6, 0')
        for p in range(2):
            q = r + 4 * p
            a('v_perm_b32 v%d, v%d, v%d, s14' % (30 + p, q + 2, q))
            a('v_perm_b32 v%d, v%d, v%d, s13' % (32 + p, q + 3, q + 1))
        a('s_cbranch_scc1 LO%d' % k)
        for p in range(2): a('v_perm_b32 v%d, v%d, v%d, s13' % (28 + p, r + 4 * p + 2, r + 4 * p))
        a('s_branch LE%d' % k)
        a.label('LO%d' % k)
        for p in range(2): a('v_perm_b32 v%d, v%d, v%d, s14' % (28 + p, r + 4 * p + 3, r + 4 * p + 1))
        a.label('LE%d' % k)
        if k == GK: vop('global_load_dword v9, v3, s[52:53] sc0 sc1', 'f')
        if k == GK + 2:
            a('v_cmp_eq_u32 s[10:11], 0, v9')
            gloads('g')
        if k + 2 < 8: uload(k + 2)
        for c in range(3): a('ds_write_b64 v%d, %s offset:%d' % (2 if c else 7, vr(28 + 2 * c, 2), c * USZ + 512 * k))
        if k in (1, 2, 3, 5, 7):
            a('v_mov_b32 v8, %d' % {1: 2, 2: 6, 3: 7, 5: 8, 7: 9}[k])
            a('ds_write_b32 v47, v8')
        if k == GK + 3:
            vneed('g')
            gtest()
            a('s_or_b64 s[10:11], s[10:11], vcc')
            a('s_cbranch_scc1 GNOT')
            gcommit()
            if opt.get('lprof', 0): stamp(6)
            a.label('GNOT')
    stamp(3)
    a('''
    s_cmp_eq_u64 s[10:11], 0
    s_cbranch_scc1 HELPER
    s_mov_b32 s1, 0
    GPOLL:
    global_load_dword v9, v3, s[52:53] sc0 sc1
    s_waitcnt vmcnt(0)
    v_cmp_eq_u32 vcc, 0, v9
    s_cbranch_vccnz GAGAIN
    ''')
    gloads('g2')
    a('s_waitcnt vmcnt(0)')
    gtest()
    a('''
    s_cbranch_vccz GOK
    GAGAIN:
    s_sleep 4
    ''')
    if BOUND:
        a('''
        s_add_u32 s1, s1, 1
        s_cmp_lt_u32 s1, 0x4000
        s_cbranch_scc1 GPOLL
        ''')
    else: a('s_branch GPOLL')
    a.label('GOK')
    gcommit()
    if opt.get('lprof', 0): stamp(6)
    a('s_branch HELPER')

    a.label('PRODUCER')
    a('''
    s_cmp_gt_u32 s3, 9
    s_cbranch_scc1 END
    s_lshl_b32 s4, s2, 5
    s_cmp_ge_u32 s3, 8
    s_cbranch_scc1 PCLEAR
    v_lshrrev_b32 v1, 3, v0
    v_lshrrev_b32 v2, 5, v0
    v_and_b32 v3, 3, v1
    v_lshl_add_u32 v2, v2, 4, v3
    s_and_b32 s5, s2, 7
    s_lshl_b32 s5, s5, 5
    s_lshr_b32 s6, s2, 3
    s_lshl_b32 s6, s6, 2
    s_add_u32 s5, s5, s6
    s_lshl_b32 s6, s3, 8
    s_add_u32 s5, s5, s6
    v_add_u32 v2, s5, v2
    v_mul_u32_u24 v2, 1280, v2
    v_and_b32 v3, 7, v0
    v_lshlrev_b32 v3, 4, v3
    v_add_u32 v2, v2, v3
    s_lshl_b32 s6, s3, 10
    s_add_u32 s4, s4, s6
    v_lshl_add_u32 v1, v1, 2, s4
    s_barrier
    s_waitcnt lgkmcnt(0)
    ''')
    a('''
    v_and_b32 v90, 1, v0
    v_lshlrev_b32 v90, 2, v90
    s_cmp_lt_u32 s3, %d
    s_cbranch_scc1 PGO
    ''' % opt.get('pfirst', 4))
    wait_flags('1', '1', 90, 91, sleep=2)
    a.label('PGO')
    for i in range(10):
        a('global_load_dwordx4 %s, v2, s[16:17] offset:%d' % (vr(8 + 4 * i, 4), 128 * i))
    stamp(1)
    wait_flags('3', '1', 90, 91, sleep=2)
    for i in range(10):
        a('ds_read_b128 %s, v3 offset:%d' % (vr(48 + 4 * i, 4), 128 * i + 64))
    a('s_waitcnt lgkmcnt(0)')
    for i in range(10):
        a('s_waitcnt vmcnt(%d)' % (9 - i))
        for d in range(4):
            a('v_dot2_f32_bf16 v%d, v%d, v%d, %s' % (4 + d, 8 + 4 * i + d, 48 + 4 * i + d, '0' if i == 0 else 'v%d' % (4 + d)))
    stamp(2)
    a('''
    v_mov_b32 v8, 0
    s_nop 1
    v_add_f32 v4, v4, v5
    v_add_f32 v6, v6, v7
    v_add_f32 v4, v4, v6
    s_nop 1
    v_add_f32_dpp v4, v4, v4 quad_perm:[1,0,3,2] row_mask:0xf bank_mask:0xf
    s_nop 1
    v_add_f32_dpp v4, v4, v4 quad_perm:[2,3,0,1] row_mask:0xf bank_mask:0xf
    s_nop 1
    v_add_f32_dpp v4, v4, v4 row_half_mirror row_mask:0xf bank_mask:0xf
    v_cvt_pk_bf16_f32 v4, v4, v4
    v_and_b32 v4, 0xffff0000, v4
    v_mul_f32 v4, 0x%x, v4
    v_exp_f32 v4, v4
    s_nop 0
    v_add_f32 v4, 1.0, v4
    v_rcp_f32 v4, v4
    s_nop 0
    v_cvt_pk_bf16_f32 v4, v4, v4
    v_and_b32 v4, 0xffff0000, v4
    ''' % (LOG2E | 0x80000000))
    a('''
    s_mov_b32 exec_lo, 0x01010101
    s_mov_b32 exec_hi, 0x01010101
    global_store_dword v1, v4, s[54:55] sc0 sc1
    ''')
    if stamps:
        a('s_waitcnt vmcnt(0)')
        stamp(3)
        a('s_mov_b64 exec, -1')
    a('s_branch FIN')
    a('''
    PCLEAR:
    v_mov_b32 v4, 0
    v_mov_b32 v2, -1
    s_cmp_eq_u32 s3, 9
    s_cbranch_scc1 PGATE
    ds_write_b32 v4, v4
    v_lshrrev_b32 v1, 3, v0
    v_and_b32 v3, 7, v0
    v_lshlrev_b32 v1, 10, v1
    v_lshl_add_u32 v1, v3, 2, v1
    v_add_u32 v1, s4, v1
    s_lshl_b32 s4, s2, 2
    v_mov_b32 v3, s4
    s_waitcnt lgkmcnt(0)
    global_store_dword v1, v2, s[54:55] sc0 sc1
    STAMP1
    s_barrier
    s_mov_b64 exec, 1
    s_waitcnt vmcnt(0)
    STAMP2
    global_store_dword v3, v2, s[52:53] sc0 sc1
    ds_write_b32 v4, v2
    STAMP3
    s_endpgm
    PGATE:
    ds_write_b32 v4, v4 offset:4
    v_lshlrev_b32 v5, 2, v0
    v_lshlrev_b32 v6, 4, v0
    s_waitcnt lgkmcnt(0)
    global_load_dwordx4 v[8:11], v6, s[48:49]
    global_load_dword v12, v5, s[48:49] offset:1024
    global_load_dword v13, v4, s[52:53] offset:128
    s_barrier
    s_waitcnt vmcnt(0)
    ds_write_b128 v6, v[8:11] offset:64
    ds_write_b32 v5, v12 offset:1088
    ds_write_b32 v4, v2 offset:4
    s_endpgm
    '''.replace('STAMP1', '%s s[82:83]' % stamps if stamps else '').replace('STAMP2', '%s s[84:85]' % stamps if stamps else '').replace('STAMP3', 's_waitcnt vmcnt(0)\n %s s[86:87]\n s_branch FIN' % stamps if stamps else ''))

    a.label('WORKER')
    stamp(1)
    a('''
    s_lshr_b32 s8, s3, 2
    s_lshl_b32 s76, s3, 8
    s_mov_b32 m0, s76
    v_mov_b32 v40, 0x3c00
    ds_write_addtid_b32 v40
    s_lshl_b32 s12, s3, 2
    s_add_u32 s12, s12, %d
    v_mov_b32 v47, s12
    v_and_b32 v41, 15, v0
    v_lshlrev_b32 v46, 2, v41
    v_add_u32 v46, %d, v46
    v_lshrrev_b32 v40, 4, v0
    v_mul_u32_u24 v45, %d, v40
    v_lshl_add_u32 v45, v41, 4, v45
    s_add_u32 m0, s76, %d
    v_lshl_add_u32 v42, v40, 4, s76
    s_movk_i32 s13, %d
    v_mad_u32_u24 v44, v41, s13, v42
    v_add_u32 v15, %d, v42
    v_and_b32 v43, 7, v0
    v_cmp_gt_u32 vcc, 8, v41
    ''' % (FL, FL, PITCH, PITCH, PITCH, 16 * PITCH))
    for reg, rows in ((21, TA_ROWS), (1, TB_ROWS)):
        w = [sum(BROW[rows[4 * q + r]] << (8 * r) for r in range(4)) for q in range(4)]
        a('''
        v_mov_b32 v28, 0x%x
        v_mov_b32 v29, 0x%x
        v_mov_b32 v30, 0x%x
        v_mov_b32 v31, 0x%x
        v_cndmask_b32 v28, v30, v28, vcc
        v_cndmask_b32 v29, v31, v29, vcc
        v_perm_b32 v28, v29, v28, v43
        v_and_b32 v28, 0xff, v28
        v_mad_u32_u24 v%d, v28, s13, v42
        ''' % (w[0], w[1], w[2], w[3], reg))
    for i in range(48, 64): a('v_mov_b32 v%d, 0' % i)
    a('''
    s_cmp_eq_u32 s11, 1
    s_cbranch_scc1 PRE1
    s_lshl_b32 s12, s3, 2
    s_lshr_b32 s13, 0x39b0a78, s12
    s_and_b32 s13, s13, 15
    s_lshl_b32 s13, s13, 8
    v_add_u32 v147, s13, v45
    s_lshr_b32 s13, 0x39b0378, s12
    s_and_b32 s13, s13, 15
    s_lshl_b32 s56, 1, s13
    s_cmp_eq_u32 s3, 6
    s_cselect_b32 s57, 2, 1
    s_lshl_b32 s13, s9, 1
    s_add_u32 s13, s13, s10
    s_mul_i32 s14, s13, %d
    s_add_u32 s14, s14, %d
    v_lshl_add_u32 v144, v0, 4, s14
    ds_write_b128 v144, v[48:51]
    ds_write_b128 v144, v[48:51] offset:1024
    ds_write_b128 v144, v[48:51] offset:2048
    v_and_b32 v42, 1, v40
    v_lshrrev_b32 v43, 1, v40
    s_add_u32 s13, s14, %d
    v_lshl_add_u32 v145, v41, 2, s13
    v_lshl_add_u32 v145, v42, 7, v145
    v_lshl_add_u32 v145, v43, 6, v145
    s_add_u32 s13, s14, %d
    v_lshl_add_u32 v146, v41, 1, s13
    v_lshl_add_u32 v146, v40, 6, v146
    s_add_u32 s14, s14, 64
    v_lshl_add_u32 v144, v41, 5, s14
    v_lshl_add_u32 v144, v42, 4, v144
    v_lshl_add_u32 v144, v43, 10, v144
    s_mul_i32 s15, s8, %d
    s_sub_u32 s14, s14, s15
    s_lshl_b32 s15, s8, 7
    s_add_u32 s14, s14, s15
    s_add_u32 s14, s14, 36
    v_lshlrev_b32 v148, 3, v40
    v_sub_u32 v148, v41, v148
    v_lshl_add_u32 v148, v148, 2, s14
    v_add_u32 v149, 1024, v148
    s_sub_u32 s15, 2048, s15
    v_add_u32 v150, s15, v148
    v_add_u32 v151, 3072, v148
    v_add_u32 v152, 4096, v148
    s_mul_i32 s13, s9, %d
    s_add_u32 s13, s13, %d
    v_lshl_add_u32 v155, v41, 5, s13
    v_lshl_add_u32 v155, v40, 4, v155
    s_lshl_b32 s14, s8, 6
    v_subrev_u32 v153, s14, v155
    v_add_u32 v154, s9, v41
    v_and_b32 v154, 3, v154
    v_lshl_add_u32 v154, v154, 2, v40
    v_lshrrev_b32 v42, 2, v41
    v_mul_u32_u24 v42, %d, v42
    v_lshl_add_u32 v154, v154, 4, v42
    v_add_u32 v154, s76, v154
    v_lshlrev_b32 v156, 4, v0
    v_add_u32 v156, %d, v156
    v_add_u32 v157, -4, v144
    s_xor_b32 s14, s3, 4
    s_lshl_b32 s58, 1, s14
    s_mov_b32 s59, -1
    s_or_b32 s58, s58, 0x400
    v_mov_b32 v167, 6
    s_branch PRE2
    PRE1:
    s_cmp_lg_u32 s3, 9
    s_cbranch_scc1 PRE2
    v_lshlrev_b32 v42, 3, v40
    v_sub_u32 v42, v42, v41
    v_add_u32 v42, 16, v42
    v_min_u32 v42, 31, v42
    s_mov_b32 s13, 0x10001
    s_movk_i32 s14, 0x3f80
    ''' % (TBSZ, TB0, Q2O + 128, Q3O + 64, TBSZ, USZ, U0 + 96, PITCH, G0))
    bands = [(11, 13), (6, 10), (5, 11), (4, 12)]
    for b, (lo, hh) in enumerate(bands):
        C = ((1 << (hh + 1)) - (1 << lo)) << 16
        r = 144 + 4 * b
        a('s_mov_b32 s12, 0x%x' % C)
        a('v_lshrrev_b32 v43, v42, s12')
        a('v_and_b32 v28, 0xaa, v43')
        a('v_and_b32 v43, 0x55, v43')
        a('v_lshl_or_b32 v43, v28, 15, v43')
        for d in range(4):
            if d: a('v_lshrrev_b32 v43, 2, v43')
            a('v_and_b32 v%d, s13, v43' % (r + d))
            if b < 4: a('v_mul_u32_u24 v%d, s14, v%d' % (r + d, r + d))
    a('v_lshlrev_b32 v42, 4, v0')
    a('v_add_u32 v42, %d, v42' % BD0)
    for b in range(4): a('ds_write_b128 v42, %s offset:%d' % (vr(144 + 4 * b, 4), 1024 * b))
    a('v_mov_b32 v43, 9')
    a('ds_write_b32 v47, v43 offset:20')
    a.label('PRE2')
    a('''
    s_mov_b32 s78, 0
    s_mov_b32 s14, 0x%x
    s_mov_b32 s15, 0x3a800000
    s_cmp_eq_u32 s10, 1
    s_cselect_b32 s14, 0x%x, s14
    s_cselect_b32 s15, 0x3b000000, s15
    s_mov_b32 s60, 0x46800000
    s_mov_b32 s61, %s
    ''' % (LOG2E, LOG2E | 0x80000000, '0x7f000000' if opt.get('slow', 0) else '0x3e800000'))
    a('''
    s_setprio 3
    s_cmp_lt_u32 s3, 7
    s_cbranch_scc1 KG_CONST0
    s_bitcmp0_b32 0x300, s3
    s_cbranch_scc1 KG_CONST1
    s_setprio %d
    KG_CONST1:
    s_waitcnt vmcnt(0)
    KG_CONST0:
    s_waitcnt vmcnt(5)
    ''' % opt.get('ph', 2))
    stamp(2)
    a.label('KG_CONST')
    a('''
    v_mul_f32 v14, 0x%x, v14
    v_exp_f32 v14, v14
    s_nop 0
    v_cvt_pk_bf16_f32 v14, v14, v14
    v_and_b32 v14, 0xffff0000, v14
    v_mul_f32 v16, s14, v14
    v_mul_f32 v17, 0x%x, v14
    v_mul_f32 v20, s15, v14
    v_mul_f32 v18, 0x41000000, v16
    v_mul_f32 v19, 0x41000000, v17
    ''' % (LOG2E, INV2PI))

    a.label('KG_LOOP')
    kstamp(1)
    a('''
    v_mul_f32 v30, 0x44800000, v4
    v_mul_f32 v31, 0x44800000, v5
    s_cmp_eq_u32 s10, 1
    s_cbranch_scc1 KG_B
    v_mul_f32 v28, v31, v7
    v_mul_f32 v31, v31, v6
    v_fmac_f32 v31, v30, v7
    v_fma_f32 v30, v30, v6, -v28
    s_branch KG_C
    KG_B:
    v_mul_f32 v2, 0x%x, v2
    v_exp_f32 v2, v2
    s_nop 0
    v_cvt_pk_bf16_f32 v2, v2, v2
    v_and_b32 v2, 0xffff0000, v2
    KG_C:
    v_mul_f32 v25, v3, v19
    v_mul_f32 v24, v2, v18
    v_mul_f32 v23, v3, v17
    v_mul_f32 v22, v2, v16
    v_fract_f32 v25, v25
    v_exp_f32 v26, v24
    v_fract_f32 v23, v23
    v_cos_f32 v24, v25
    v_sin_f32 v25, v25
    v_cmp_nge_f32 s[12:13], 0, v22
    v_exp_f32 v28, v22
    v_mul_f32 v24, v24, v26
    v_mul_f32 v25, v25, v26
    v_cos_f32 v22, v23
    v_sin_f32 v23, v23
    v_max_f32 v29, |v30|, |v31|
    v_mul_f32 v22, v22, v28
    v_mul_f32 v23, v23, v28
    v_cmp_nge_f32 vcc, s60, v29
    s_nop 0
    s_or_b64 vcc, vcc, s[12:13]
    s_cbranch_scc1 KG_SLOW
    v_cmp_le_f32 vcc, s61, v29
    v_cvt_pk_f16_f32 v97, v24, v25
    s_cbranch_vccz KG_SLOW
    ''' % LOG2E)
    hi[0] = 1
    Y = lambda j: 96 + j
    kstamp(2)
    wrow(1, Y(1))
    for top in (2, 4, 8, 16):
        cmul(24, 24, 24, t=26)
        a('v_cvt_pk_f16_f32 v%d, v24, v25' % Y(top))
        wrow(top, Y(top))
        if top == 16: break
        for j in range(1, top):
            hmul(Y(top + j), Y(j), Y(top), False)
            wrow(top + j, Y(top + j))
    cmul(24, 24, 24, t=26)
    kstamp(3)
    for s in range(4):
        a('ds_read_b128 %s, v44 offset:%d' % (vr(64 + 8 * s, 4), 64 * s))
        a('ds_read_b128 %s, v15 offset:%d' % (vr(68 + 8 * s, 4), 64 * s))
    kstamp(4)
    a('''
    v_cvt_pk_f16_f32 v32, v30, -v31
    v_cvt_pk_f16_f32 v22, v22, v23
    v_cvt_pk_f16_f32 v24, v24, v25
    ''')
    X = lambda r: 32 + r // 2
    wrow(BROW[0], X(0))
    cur = X(0)
    for r in range(1, 9):
        d = X(r) if r % 2 == 0 else 40 + (r // 2)
        if r < 8: hmul(d, cur, 22, True)
        else: hmul(d, X(0), Y(1), True)
        cur = d
        wrow(BROW[r], d)
    a('''
    s_bitcmp0_b32 0x%x, s3
    s_cbranch_scc1 PRIOM
    s_setprio %d
    s_cmp_eq_u32 s78, 0
    s_cbranch_scc1 PRIOM
    s_setprio %d
    PRIOM:
    ''' % (opt.get('pm', 0x33), opt.get('p1', 2), opt.get('p3', 1)))
    for r, base in TAILB:
        hmul(X(r), X(r), 24, True)
        wrow(BROW[base], X(r))
    def kmf(typ, t, tile, s):
        d = 48 + 8 * tile + 4 * t
        a('v_mfma_f32_16x16x32_%s %s, %s, %s, %s' % (typ, vr(d, 4), vr(96 + 8 * s + 4 * tile, 4), vr(64 + 8 * s + 4 * t, 4), vr(d, 4)))
    def kg_tail(typ, sfx):
        kstamp(5)
        a('''
        s_cmp_lg_u32 s78, 1
        s_cbranch_scc1 KG_NP%s
        ds_read_b32 v26, v46
        ''' % sfx)
        for q in range(4): a('ds_read_b128 %s, v147 offset:%d' % (vr(128 + 4 * q, 4), 4 * q * PITCH))
        a.label('KG_NP' + sfx)
        for s in range(4):
            a('ds_read_b128 %s, v21 offset:%d' % (vr(96 + 8 * s, 4), 64 * s))
            a('ds_read_b128 %s, v1 offset:%d' % (vr(100 + 8 * s, 4), 64 * s))
        kstamp(6)
        movs = ['v_mov_b32 v%d, v%d' % (2 + i, 8 + i) for i in range(6)]
        if typ == 'bf16':
            a('s_waitcnt vmcnt(0) lgkmcnt(0)')
            for x in movs: a(x)
            for s in range(4):
                for t in range(2):
                    for tile in range(2): kmf(typ, t, tile, s)
            return
        ex = lambda s, d: hmul(68 + 8 * s + d, 64 + 8 * s + d, 68 + 8 * s + d, False)
        a('s_waitcnt lgkmcnt(8)')
        for d in range(4): ex(0, d)
        def steps(lo, hi_, pre):
            for s in range(lo, hi_):
                if not pre or s < 2: a('s_waitcnt lgkmcnt(%d)' % (6 - 2 * s))
                n = 0
                for t in range(2):
                    for tile in range(2):
                        kmf(typ, t, tile, s)
                        if s < 3: ex(s + 1, n)
                        elif not pre and n < 3:
                            if n == 0: a('s_waitcnt vmcnt(0)')
                            a(movs[2 * n]); a(movs[2 * n + 1])
                        if pre and s == 3: kpre(n)
                        n += 1
        def kpre(f):
            o = 64 * (f % 4)
            a('ds_read2_b32 %s, v%d offset0:%d offset1:%d' % (vr(64 + 4 * f, 2), 148 + f // 4, o + 6, o + 4))
            a('ds_read2_b32 %s, v%d offset0:%d offset1:%d' % (vr(66 + 4 * f, 2), 148 + f // 4, o + 2, o))
        steps(0, 3, False)
        a('''
        s_and_b32 s12, s78, s8
        s_cmp_lg_u32 s12, 1
        s_cbranch_scc1 KG_MF
        s_mov_b32 s59, 0
        s_waitcnt lgkmcnt(0)
        ds_read_b32 v27, v46
        ''')
        steps(3, 4, True)
        for f in range(4, 8): kpre(f)
        a('s_branch KG_JOIN')
        a.label('KG_MF')
        steps(3, 4, False)
    kg_tail('f16', 'F')
    a.label('KG_JOIN')
    kstamp(7)
    a('''
    s_cmp_eq_u32 s11, 1
    s_cbranch_scc1 ONEW
    s_add_u32 s78, s78, 1
    s_cmp_eq_u32 s78, 1
    s_cbranch_scc1 KG_LOOP
    s_setprio 3
    v_cmp_le_u32 vcc, s57, v26
    s_andn2_b32 s12, s56, vcc_lo
    s_cbranch_scc0 KG_HAVE
    ''')
    wait_flags('s56', 's57', 46, 28)
    for q in range(4): a('ds_read_b128 %s, v147 offset:%d' % (vr(128 + 4 * q, 4), 4 * q * PITCH))
    a('s_waitcnt lgkmcnt(0)')
    a.label('KG_HAVE')
    stamp(3)
    ds = DS(a)
    KF = lambda sec, f: 64 + 32 * sec + 4 * f
    K16 = lambda sec: 128 + 4 * sec
    KSP = lambda sec: 136 + 4 * sec
    UX, US = 18, 40
    UF = lambda b, f: (2 if b % 2 == 0 else 24) + 4 * f
    AC = lambda P, sec: 48 + 8 * (P % 2) + 4 * sec
    GR = 162; OT = 158
    def kread(sec, f):
        base = 148 + 3 * sec + f // 4
        o = 64 * (f % 4)
        ds.op('ds_read2_b32 %s, v%d offset0:%d offset1:%d' % (vr(KF(sec, f), 2), base, o + 6, o + 4), ('K', sec, f))
        ds.op('ds_read2_b32 %s, v%d offset0:%d offset1:%d' % (vr(KF(sec, f) + 2, 2), base, o + 2, o), ('K', sec, f))
    def xread(reg, sec, o, tag):
        ds.op('ds_read2_b32 %s, v%d offset0:%d offset1:%d' % (vr(reg, 2), 23 if sec else 150, o + 6, o + 4), tag)
        ds.op('ds_read2_b32 %s, v%d offset0:%d offset1:%d' % (vr(reg + 2, 2), 23 if sec else 150, o + 2, o), tag)
    def uread(b, f): ds.op('ds_read_b128 %s, v153 offset:%d' % (vr(UF(b, f), 4), 512 * b + 384 - 128 * f), ('U', b, f))
    def gread(b): ds.op('ds_read_b128 %s, v156 offset:%d' % (vr(GR, 4), 1024 * b), ('G', b))
    def lp_valu(part):
        if part == 0:
            return ['v_mov_b32 v40, v135', 'v_mov_b32 v41, v135', 'v_and_b32 v42, 0xffff0000, v135', 'v_mov_b32 v43, 0']
        return ['v_lshrrev_b32 v136, 16, v140', 'v_and_b32 v138, 0xffff0000, v140', 'v_or_b32 v137, v136, v138', 'v_mov_b32 v139, 0']
    def lp_write(parts):
        a('s_mov_b32 exec_lo, 0')
        a('s_brev_b32 exec_hi, 1')
        for part in parts: ds.op('ds_write_b128 v144, v[40:43] offset:528' if part == 0 else 'ds_write_b128 v144, v[136:139] offset:656')
        a('s_mov_b64 exec, -1')
    a('''
    s_cmp_eq_u32 s8, 0
    s_cbranch_scc1 NOEARLY
    ''')
    ds.opt = True
    for f in range(4): uread(0, f)
    gread(0)
    ds.opt = False
    a.label('NOEARLY')
    a('v_add_f32 v136, v136, v166')
    for q in (0, 1, 2, 3, 8):
        a('v_fma_f32 v%d, v%d, v20, v%d' % (48 + q, 48 + q, 128 + q))
    for r in range(4): a('v_cvt_pk_bf16_f32 v%d, v%d, v%d' % (128 + r, 48 + r, 47 + r if r else 56))
    ds.op('ds_write_b128 v144, v[128:131]')
    for q in (4, 5, 6, 7, 12):
        a('v_fma_f32 v%d, v%d, v20, v%d' % (48 + q, 48 + q, 128 + q))
    for r in range(4): a('v_cvt_pk_bf16_f32 v%d, v%d, v%d' % (132 + r, 52 + r, 51 + r if r else 60))
    ds.op('ds_write_b128 v144, v[132:135] offset:512')
    a('''
    v_cvt_pk_bf16_f32 v136, v56, 0
    s_mov_b64 exec, 1
    ''')
    ds.op('ds_write_b32 v157, v136')
    a('s_mov_b64 exec, -1')
    QV = ['v_fma_f32 v%d, v%d, v20, v%d' % (128 + q, 48 + q, 128 + q) for q in (9, 10, 13, 14, 11, 15)]
    QC = '''
        v_cvt_pk_bf16_f32 v140, v137, v138
        s_mov_b32 exec_lo, 0
        v_cvt_pk_bf16_f32 v140, v141, v142
        s_mov_b32 exec_lo, -1
        v_cvt_pk_bf16_f32 v141, v139, v143
        '''
    QW = ['ds_write_b32 v145, v140', 'ds_write_b16 v146, v141', 'ds_write_b16_d16_hi v146, v141 offset:32']
    def flag(v):
        a('v_mov_b32 v167, %d' % v)
        ds.op('ds_write_b32 v47, v167')
    nop = lambda: None
    def L(*xs):
        def f():
            for x in xs:
                if callable(x): x()
                elif x.startswith('ds_'): ds.op(x)
                else: a(x)
        return f
    def out_c(b, r, accA=None):
        accA = AC(b, 0) if accA is None else accA
        ds.need(('G', b))
        a('v_sub_f32 v%d, v%d, v%d' % (OT + r, accA + r, AC(b, 1) + r))
        a('v_fma_f32 v%d, v%d, v%d, v%d' % (OT + r, OT + r, GR + r, AC(b, 1) + r))
    def out_w(b):
        off = 4 * PITCH * b
        if b >= 5: off -= 4 * PITCH * 5
        ds.op('ds_write_b128 v154, %s offset:%d' % (vr(OT, 4), off))
    def fin(b, sec, f, d=None):
        d = AC(b, sec) if d is None else d
        ds.need(('U', b, f), ('K', sec, f))
        mf(d, KF(sec, f), UF(b, f), None if (b == 0 and f == 0) else d)
    def sta(b, sec, f):
        ds.need(('U', b, f), ('K', sec, f + 4))
        mf(AC(b + 1, sec), KF(sec, f + 4), UF(b, f), None if f == 0 else AC(b + 1, sec))
    def seq(ms, fill):
        fill = list(fill)
        for m in ms:
            m()
            if fill: fill.pop(0)()
        for f in fill: f()
    def gslow(tag):
        a('s_cmp_lg_u32 s79, 0')
        a('s_cbranch_scc1 G_SLOW%s' % tag)
        a.label('G_GO%s' % tag)
    F = lambda b, sec, f, d=None: (lambda: fin(b, sec, f, d))
    S = lambda b, sec, f: (lambda: sta(b, sec, f))
    K = lambda sec, f: (lambda: kread(sec, f))
    U = lambda b, f: (lambda: uread(b, f))
    O = lambda b, r, acc=None: (lambda: out_c(b, r, acc))
    ds.op('ds_write_b32 v47, v167')
    a('''
    s_cmp_eq_u32 s8, 0
    s_cbranch_scc1 FIRST_X
    ''')
    for f in range(4): kread(1, f)
    a('''
    s_waitcnt lgkmcnt(8)
    v_cmp_le_u32 vcc, 6, v27
    s_andn2_b32 s12, s58, vcc_lo
    s_andn2_b32 s79, 0x2000, vcc_lo
    s_or_b32 s12, s12, s59
    s_cbranch_scc1 FIRST_Y
    ''')
    ds.q = [x for x in ds.q if x[0] and x[0][0] == 'K']
    a.label('FIRST_GO')
    stamp(4)
    cstamp(1)
    l0 = lp_valu(0); l1 = lp_valu(1)
    seq([F(0, 0, f) for f in range(4)] + [F(0, 1, f) for f in range(4)],
        [L(QV[0], QV[1]), L(QV[2], QV[3]), L(QV[4], QV[5]), L(QC), L(l0[0], l0[1]), L(l0[2], l0[3]), nop, nop])
    gslow('Y')
    for x in QW: ds.op(x)
    lp_write([0])
    for r in range(4): out_c(0, r)
    out_w(0); flag(8)
    seq([S(0, 0, f) for f in range(4)] + [S(0, 1, f) for f in range(4)],
        [K(1, 4), K(1, 5), K(1, 6), K(1, 7), L(U(1, 0), U(1, 1)), L(U(1, 2), U(1, 3)), L(l1[0], l1[1]), L(l1[2], l1[3])])
    cstamp(2)
    seq([F(1, sec, f) for f in range(4) for sec in range(2)], [lambda: gread(1), lambda: lp_write([1]), U(2, 0), U(2, 1), U(2, 2), U(2, 3)])
    seq([S(1, sec, f) for f in range(4) for sec in range(2)],
        [L('ds_read_b32 v166, v46'), L('s_nop 3'), O(1, 0), O(1, 1), O(1, 2), O(1, 3), lambda: out_w(1), L(lambda: flag(9), 's_setprio 2')])
    a('s_waitcnt lgkmcnt(2)')
    a.label('BLOCK2')
    ds.q = []
    a('''
    v_cmp_le_u32 vcc, 9, v166
    s_andn2_b32 s12, 0x400, vcc_lo
    s_cbranch_scc1 U_SLOW
    U_GO:
    ''')
    for b in range(2, 8):
        if b in (2, 3, 5, 7): cstamp({2: 3, 3: 4, 5: 5, 7: 6}[b])
        def xloads():
            a('s_cmp_lg_u32 s8, %d' % (b % 2))
            a('s_cbranch_scc1 XL%d' % b)
            ds.opt = True
            ds.op('ds_read_b128 %s, v155 offset:%d' % (vr(US, 4), 512 * (b - 3) + 384), ('X', b))
            if b in (3, 4):
                ds.need('PF')
                a('v_cmp_le_u32 vcc, 9, v166')
                a('s_andn2_b32 s12, s58, vcc_lo')
                a('s_cbranch_scc0 XK%d' % b)
                wait_flags('s58', '9', 46, 166)
                a.label('XK%d' % b)
                for sec in range(2): xread(KSP(sec), sec, 30, ('X', b))
            ds.opt = False
            a.label('XL%d' % b)
        fill = [lambda: gread(b)]
        if b == 3: fill = [L(lambda: gread(b), lambda: ds.op('ds_read_b32 v166, v46', 'PF'), 'v_add_u32 v23, 3072, v150')]
        if b == 5: fill = [L(lambda: gread(b), 'v_add_u32 v154, %d, v154' % (4 * PITCH * 5))]
        if b < 7: fill += [U(b + 1, f) for f in range(4)]
        if 3 <= b < 7: fill += [nop, xloads]
        seq([F(b, sec, f) for f in range(4) for sec in range(2)], fill)
        if b == 7:
            a('s_nop 7')
            for r in range(4): out_c(b, r)
            out_w(b); flag(8 + b)
            break
        seq([S(b, sec, f) for f in range(4) for sec in range(2)],
            [nop, L('s_nop 4'), O(b, 0), O(b, 1), O(b, 2), O(b, 3), lambda: out_w(b), lambda: flag(8 + b)])
        a('s_cmp_lg_u32 s8, %d' % (b % 2))
        a('s_cbranch_scc1 XM%d' % b)
        if b < 6: a('s_setprio %d' % (2 - b // 2))
        if b >= 3:
            ds.opt = True
            ds.need(('X', b))
            ds.opt = False
            for sec in range(2): mf(AC(b + 1, sec), KSP(sec), US, AC(b + 1, sec))
        a.label('XM%d' % b)
    stamp(5)
    cstamp(7)
    a('s_branch FIN')
    a.label('FIRST_X')
    ds.q = []
    Z = 128
    a('s_setprio %d' % opt.get('xp', 0))
    ds.op('ds_read_b32 v28, v46', 'F')
    for f in range(4): kread(0, f)
    for x in QV: a(x)
    a(QC)
    for x in l0 + l1: a(x)
    for x in QW: ds.op(x)
    lp_write([0, 1])
    flag(7)
    ds.need('F')
    a('''
    v_cmp_le_u32 vcc, 6, v28
    s_andn2_b32 s12, 0x400, vcc_lo
    s_cbranch_scc0 X_U
    ''')
    wait_flags('0x400', '6', 46, 28)
    a.label('X_U')
    for f in range(4): uread(0, f)
    seq([F(0, 0, f, Z) for f in range(4)] + [S(0, 0, f) for f in range(4)] + [F(1, 0, f) for f in range(4)] + [S(1, 0, f) for f in range(4)],
        [K(0, 4), K(0, 5), K(0, 6), K(0, 7), U(1, 0), U(1, 1), U(1, 2), U(1, 3)])
    wait_flags('s58', '6', 46, 28, sleep=opt.get('xs', 1))
    ds.drained()
    a('s_setprio 3')
    stamp(4)
    cstamp(1)
    a('s_andn2_b32 s79, 0x2000, vcc_lo')
    kread(1, 0); kread(1, 1); kread(1, 2); kread(1, 3); gread(0)
    seq([F(0, 1, f) for f in range(4)], [K(1, 4), nop, nop, nop])
    gslow('X')
    kread(1, 5); kread(1, 6); kread(1, 7)
    for r in range(4): out_c(0, r, Z)
    out_w(0); flag(8)
    a('s_setprio 2')
    seq([S(0, 1, f) for f in range(4)], [lambda: gread(1), U(2, 0), U(2, 1), U(2, 2)])
    cstamp(2)
    seq([F(1, 1, f) for f in range(4)], [U(2, 3), L('ds_read_b32 v166, v46')])
    seq([S(1, 1, f) for f in range(4)], [nop, L('s_nop 4'), L(O(1, 0), O(1, 1)), L(O(1, 2), O(1, 3))])
    out_w(1); flag(9)
    a('s_waitcnt lgkmcnt(2)')
    a('s_branch BLOCK2')
    a.label('FIRST_Y')
    wait_flags('s58', '6', 46, 28)
    a('s_andn2_b32 s79, 0x2000, vcc_lo')
    for f in range(4): uread(0, f)
    gread(0)
    for f in range(8): kread(0, f)
    a('s_waitcnt lgkmcnt(8)')
    a('s_branch FIRST_GO')
    for tag in 'XY':
        a.label('G_SLOW' + tag)
        wait_flags('0x2000', '6', 46, 166)
        gread(0)
        a('s_waitcnt lgkmcnt(0)')
        a('s_branch G_GO' + tag)
    a.label('U_SLOW')
    wait_flags('0x400', '9', 46, 166)
    a('s_branch U_GO')

    a.label('ONEW')
    a('''
    s_cmp_eq_u32 s3, 3
    s_cselect_b32 s12, 1, 0
    s_cmp_eq_u32 s78, 0
    s_cselect_b32 s12, s12, 0
    s_cmp_eq_u32 s12, 1
    s_cselect_b32 s13, 2560, s76
    s_mov_b32 s78, 2
    v_add_u32 v29, s13, v45
    s_cselect_b32 s12, 1, 9
    v_mov_b32 v28, s12
    v_mov_b32 v14, v6
    ''')
    for q in range(4):
        for r in range(4): a('v_mul_f32 v%d, v%d, v20' % (48 + 4 * q + r, 48 + 4 * q + r))
        a('ds_write_b128 v29, %s offset:%d' % (vr(48 + 4 * q, 4), 4 * q * PITCH))
    a('''
    ds_write_b32 v47, v28
    s_cbranch_scc0 ONEW2
    ''')
    a('''
    s_setprio %d
    s_mov_b32 s10, 1
    s_mov_b32 s14, 0x%x
    s_mov_b32 s15, 0x3b000000
    ''' % (opt.get('t0p', 3), LOG2E | 0x80000000))
    for i in range(48, 64): a('v_mov_b32 v%d, 0' % i)
    a('s_branch KG_CONST')
    a.label('ONEW2')
    a('s_setprio 0')
    stamp(3)
    a('''
    s_cmp_lg_u32 s7, 3
    s_cbranch_scc1 HELPER
    ''')
    B3, B5, B7, B9, BS = 144, 148, 152, 156, 160
    S2 = lambda kap, half: 64 + 8 * kap + 4 * half
    S3 = lambda kap: 112 + 4 * kap
    k2regs = list(range(8, 44, 4)) + [128, 132, 136]
    K2 = lambda ssm, dl, half: k2regs[(ssm * 3 + dl) * 2 + half]
    K3 = lambda ssm, dl: [144, 64, 72, 80][dl] + 4 * ssm
    KS = lambda ssm: 56 + 4 * ssm
    TA = 48
    UA = 140
    CV = 164
    a('''
    v_and_b32 v6, 15, v0
    v_lshrrev_b32 v7, 4, v0
    s_mul_i32 s13, s8, %d
    s_add_u32 s13, s13, %d
    v_lshl_add_u32 v2, v6, 5, s13
    v_lshl_add_u32 v2, v7, 4, v2
    s_mul_i32 s14, s8, %d
    s_add_u32 s13, s14, %d
    v_lshl_add_u32 v3, v6, 3, s13
    v_lshlrev_b32 v4, 5, v7
    v_sub_u32 v3, v3, v4
    s_add_u32 s13, s14, %d
    v_lshlrev_b32 v4, 2, v7
    v_sub_u32 v4, v6, v4
    v_lshl_add_u32 v4, v4, 2, s13
    v_add_u32 v44, %d, v4
    v_add_u32 v5, s8, v6
    v_and_b32 v5, 3, v5
    v_lshl_add_u32 v5, v5, 2, v7
    v_lshrrev_b32 v7, 2, v6
    v_mul_u32_u24 v7, %d, v7
    v_lshl_add_u32 v5, v5, 4, v7
    s_add_u32 s13, s76, %d
    v_add_u32 v5, s13, v5
    v_lshrrev_b32 v7, 4, v0
    v_lshlrev_b32 v7, 3, v7
    v_sub_u32 v7, v6, v7
    s_add_u32 s13, s14, %d
    v_lshl_add_u32 v7, v7, 2, s13
    v_add_u32 v1, 3072, v7
    s_lshl_b32 s56, 1, s8
    s_lshl_b32 s13, s8, 3
    s_lshr_b32 s57, 0x502050, s13
    s_and_b32 s57, s57, 0xff
    s_or_b32 s57, s57, 0x2000
    v_lshlrev_b32 v45, 4, v0
    v_add_u32 v45, %d, v45
    ''' % (USZ, U0 + 512 - 48, 2 * TBSZ, TB0 + Q2O + 104, TB0 + Q3O + 52, TBSZ, PITCH, 8 * PITCH, TB0 + 537 * 4, G0))
    wait_flags('0x4400', '2', 46, 6, sleep=4)
    for b in range(4): a('ds_read_b128 %s, v45 offset:%d' % (vr(144 + 4 * b, 4), 8192 + 1024 * b))
    a('s_setprio 2')
    stamp(4)
    DTS = [[24, 28, 32, 36, 40, 128], [48, 52, 56, 60, 132, 136]]
    def turead(kap):
        b = 8 + 8 * (kap % 2)
        a('ds_read_b128 %s, v2 offset:%d' % (vr(b, 4), 512 * kap + 16))
        a('ds_read_b128 %s, v2 offset:%d' % (vr(b + 4, 4), 512 * kap))
    def cvts(kap):
        DT = DTS[kap % 2]; r = []
        for half, r0 in ((0, 2), (1, 0)):
            r.append('v_cvt_pk_bf16_f32 v%d, v%d, v%d' % (S2(kap, half), DT[0] + r0 + 1, DT[1] + r0 + 1))
            r.append('v_cvt_pk_bf16_f32 v%d, v%d, v%d' % (S2(kap, half) + 2, DT[0] + r0, DT[1] + r0))
        for half, r0 in ((0, 2), (1, 0)):
            r.append('v_cvt_pk_bf16_f32 v%d, v%d, v%d' % (S2(kap, half) + 1, DT[2] + r0 + 1, DT[3] + r0 + 1))
            r.append('v_cvt_pk_bf16_f32 v%d, v%d, v%d' % (S2(kap, half) + 3, DT[2] + r0, DT[3] + r0))
        if kap < 4:
            for d in range(4): r.append('v_cvt_pk_bf16_f32 v%d, v%d, v%d' % (S3(kap) + d, DT[4] + 3 - d, DT[5] + 3 - d))
        return r
    turead(0); turead(1)
    pend = []
    for kap in range(6):
        b = 8 + 8 * (kap % 2); DT = DTS[kap % 2]
        a('s_waitcnt lgkmcnt(%d)' % (2 if kap < 5 else 0))
        ms = [(DT[0], b, B3), (DT[1], b, B5), (DT[2], b + 4, B3), (DT[3], b + 4, B5)]
        if kap < 4: ms += [(DT[4], b, B7), (DT[5], b + 4, B9)]
        per = -(-len(pend) // len(ms))
        for m in ms:
            mf(m[0], m[1], m[2], None)
            for _ in range(per):
                if pend: a(pend.pop(0))
        if kap in (0, 2): wait_flags('0x400', str(7 + kap // 2), 46, 6, sleep=4)
        if kap + 2 < 6: turead(kap + 2)
        pend = cvts(kap)
    a('s_nop 1')
    for x in pend: a(x)
    stamp(5)
    if opt.get('not', 0): a('s_branch FIN')
    td = DS(a)
    def k2read(ssm, dl, half):
        for p in range(2):
            td.op('ds_read_b64 %s, v3 offset:%d' % (vr(K2(ssm, dl, half) + 2 * p, 2), ssm * TBSZ + 128 * dl + 16 * half + 8 * p), ('2', ssm, dl, half))
    def k3read(ssm, dl):
        o = 16 * dl
        td.op('ds_read2_b32 %s, v%d offset0:%d offset1:%d' % (vr(K3(ssm, dl), 2), 44 if ssm else 4, o, o + 1), ('3', ssm, dl))
        td.op('ds_read2_b32 %s, v%d offset0:%d offset1:%d' % (vr(K3(ssm, dl) + 2, 2), 44 if ssm else 4, o + 2, o + 3), ('3', ssm, dl))
    TA_ = lambda P, ssm: [48, 52, 56][P % 3] if ssm == 0 else [60, 140][P % 2]
    TG = lambda P: 164
    T16 = lambda ssm: 152 + 4 * ssm
    TU = 160
    def tg(P): td.op('ds_read_b128 %s, v45 offset:%d' % (vr(TG(P), 4), 1024 * P), ('G', P))
    def tu(P): td.op('ds_read_b128 %s, v2 offset:%d' % (vr(TU, 4), 512 * (P - 2) + 16), ('U', P))
    def t16(ssm):
        td.op('ds_read2_b32 %s, v%d offset0:6 offset1:4' % (vr(T16(ssm), 2), 1 if ssm else 7), ('6', ssm))
        td.op('ds_read2_b32 %s, v%d offset0:2 offset1:0' % (vr(T16(ssm) + 2, 2), 1 if ssm else 7), ('6', ssm))
    def terms(P, ssm):
        r = []
        for dl in range(3):
            kap = P - 2 - dl
            if kap >= 0:
                for half in range(2): r.append((P, ssm, S2(kap, half), K2(ssm, dl, half), [('2', ssm, dl, half)]))
        for dl in range(4):
            kap = P - 4 - dl
            if kap >= 0: r.append((P, ssm, S3(kap), K3(ssm, dl), [('3', ssm, dl)]))
        return r
    def x16(P): return [(P, ssm, T16(ssm), TU, [('6', ssm), ('U', P)]) for ssm in range(2)]
    started = set()
    def run_seq(seq, fill):
        fill = list(fill)
        for (P, ssm, x, y, tags) in seq:
            td.need(*tags)
            mf(TA_(P, ssm), x, y, TA_(P, ssm) if (P, ssm) in started else None)
            started.add((P, ssm))
            if fill: fill.pop(0)()
        for f in fill: f()
    def epi(P):
        def e1(r):
            a('v_sub_f32 v%d, v%d, v%d' % (TA_(P, 0) + r, TA_(P, 0) + r, TA_(P, 1) + r))
            a('v_sub_f32 v%d, v%d, v%d' % (TA_(P, 0) + r + 1, TA_(P, 0) + r + 1, TA_(P, 1) + r + 1))
        def e2(r):
            td.need(('G', P))
            for q in (r, r + 1): a('v_fma_f32 v%d, v%d, v%d, v%d' % (TG(P) + q, TA_(P, 0) + q, TG(P) + q, TA_(P, 1) + q))
        def e3():
            a('v_mov_b32 v6, %d' % (8 + P))
            td.op('ds_write_b128 v5, %s offset:%d' % (vr(TG(P), 4), 4 * PITCH * (P - 2)))
        def e4():
            td.op('ds_write_b32 v47, v6')
            cstamp(P - 1)
            if P in (3, 5): a('s_setprio %d' % ((5 - P) // 2))
        r = [lambda: e1(0), lambda: e1(2), lambda: e2(0), lambda: e2(2), e3, e4]
        if P < 7: r.append(lambda: tg(P + 1))
        return r
    wait_flags('s56', '7', 46, 6, sleep=2)
    k2read(0, 0, 0); k2read(0, 0, 1); k2read(0, 1, 0); k2read(0, 1, 1)
    run_seq(terms(2, 0) + terms(3, 0) + terms(4, 0), [lambda: k2read(0, 2, 0), lambda: k2read(0, 2, 1), lambda: k3read(0, 0), lambda: t16(0), lambda: tu(2)])
    wait_flags('s57', '7', 46, 6, sleep=1)
    td.drained()
    stamp(6)
    t16(1); k2read(1, 0, 0); k2read(1, 0, 1); tg(2)
    E = {P: epi(P) for P in range(2, 8)}
    def inter(P):
        x, y = terms(P, 0), terms(P, 1)
        return [t for pr_ in zip(x, y) for t in pr_]
    run_seq(x16(2) + terms(2, 1), [lambda: k2read(1, 1, 0), lambda: (tu(3), k2read(1, 1, 1)), lambda: k2read(1, 2, 0), lambda: k2read(1, 2, 1)])
    run_seq(terms(3, 1) + x16(3), [lambda: k3read(1, 0), nop, nop] + E[2][:2] + [lambda: (tu(4), E[2][2]())] + E[2][3:])
    run_seq(terms(4, 1) + x16(4), [nop] + E[3] + [lambda: tu(5)])
    for P in (5, 6, 7):
        run_seq(x16(P) + inter(P), [lambda: k3read(0, P - 4), lambda: (k3read(1, P - 4), tu(P + 1) if P < 7 else None), nop] + E[P - 1])
    a('s_nop 7')
    for f in E[7][:5]: f()
    td.op('ds_write_b32 v47, v6')
    stamp(7)
    cstamp(7)
    a('s_branch FIN')

    a.label('HELPER')
    if opt.get('nohelp', 0): a('s_branch FIN')
    a('''
    s_mov_b32 s60, s50
    s_mov_b32 s61, s51
    s_mov_b32 s62, 2621440
    s_mov_b32 s63, 0x20000
    v_lshrrev_b32 v20, 2, v0
    v_and_b32 v21, 3, v0
    v_lshl_add_u32 v22, v21, 2, v20
    v_and_b32 v22, 15, v22
    v_lshlrev_b32 v22, 4, v22
    s_mul_i32 s14, s7, %d
    v_add_u32 v22, s14, v22
    v_lshl_add_u32 v23, v21, 10, v22
    v_add_u32 v23, 768, v23
    v_lshl_add_u32 v22, v21, 8, v22
    v_mul_u32_u24 v25, 5120, v20
    v_add_u32 v26, s6, v21
    v_lshl_add_u32 v25, v26, 1, v25
    v_lshl_add_u32 v26, v21, 2, 3
    v_and_b32 v27, 7, v0
    v_cmp_gt_u32 vcc, 8, v0
    s_nop 1
    v_cndmask_b32 v26, v26, v27, vcc
    v_lshlrev_b32 v26, 2, v26
    v_add_u32 v26, %d, v26
    s_mov_b32 exec_lo, 0x77777777
    s_mov_b32 exec_hi, 0x77777777
    s_add_u32 s78, s7, 32
    s_mul_i32 s13, s7, 81920
    s_mov_b32 s14, 8
    s_movk_i32 s15, 0x777
    ''' % (PITCH, FL))
    stamp(5)
    a('s_setprio 0')
    wait_flags('0x77', '6', 26, 28, sleep=4)
    a('s_setprio 3')
    a.label('HSLOW')
    wait_flags('s15', 's14', 26, 28)
    hreads = '''
    ds_read_b128 v[12:15], v22
    ds_read_b128 v[16:19], v22 offset:1024
    ds_read_b128 v[32:35], v23
    '''
    a(hreads)
    a.label('HGO')
    if stamps and opt.get('cprof', 0):
        for k, lo in ((1, 0), (2, 6), (3, 12), (4, 18), (5, 24), (6, 27)):
            a('s_sub_u32 s12, s78, %d' % (lo + 32))
            a('s_cmp_lt_u32 s12, 3')
            a('s_cbranch_scc0 HS%d' % k)
            cstamp(k)
            a.label('HS%d' % k)
    a('''
    v_add_u32 v22, %d, v22
    v_add_u32 v23, %d, v23
    s_cmp_lt_u32 s78, 40
    s_waitcnt lgkmcnt(1)
    ''' % (3 * PITCH, 3 * PITCH))
    for r in range(4): a('v_add_f32 v%d, v%d, v%d' % (8 + r, 12 + r, 16 + r))
    a('''
    s_waitcnt lgkmcnt(0)
    s_cbranch_scc1 HNOT
    ''')
    for r in range(4): a('v_add_f32 v%d, v%d, v%d' % (8 + r, 8 + r, 32 + r))
    a('''
    HNOT:
    ds_read_b32 v28, v26
    ''')
    a(hreads)
    a('''
    v_cvt_pk_bf16_f32 v36, v8, v9
    v_cvt_pk_bf16_f32 v37, v10, v11
    s_add_u32 s78, s78, 3
    s_lshr_b32 s14, s78, 2
    buffer_store_short v36, v25, s[60:63], s13 offen
    buffer_store_short_d16_hi v36, v25, s[60:63], s13 offen offset:1280
    buffer_store_short v37, v25, s[60:63], s13 offen offset:2560
    buffer_store_short_d16_hi v37, v25, s[60:63], s13 offen offset:3840
    s_add_u32 s13, s13, 245760
    s_waitcnt lgkmcnt(3)
    v_cmp_le_u32 vcc, s14, v28
    s_andn2_b32 s12, s15, vcc_lo
    s_cbranch_scc0 HGO
    s_cmp_lt_u32 s78, 64
    s_cbranch_scc1 HSLOW
    ''')
    if stamps:
        a('s_waitcnt vmcnt(0)')
        stamp(7)
        cstamp(7)
        a('s_mov_b64 exec, -1')
    a.label('FIN')
    if opt.get('wb', -1) >= 0:
        a('''
        s_cmp_lg_u32 s3, %d
        s_cbranch_scc1 NOWB
        s_lshr_b32 s12, s2, 3
        s_cmp_lg_u32 s12, 31
        s_cbranch_scc1 NOWB
        buffer_wbl2 %s
        NOWB:
        ''' % (opt['wb'], 'sc0 sc1' if opt.get('wbs', 0) else 'sc1'))
    if stamps:
        a('s_waitcnt lgkmcnt(0)')
        for k in range(8): a('v_mov_b32 v%d, s%d' % (8 + k, 80 + 2 * k))
        a('''
        s_mul_i32 s12, s2, 12
        s_add_u32 s12, s12, s3
        s_lshl_b32 s12, s12, 6
        s_add_u32 s12, s12, 65536
        s_getreg_b32 s13, hwreg(HW_REG_HW_ID)
        s_memtime s[80:81]
        s_memrealtime s[82:83]
        s_waitcnt lgkmcnt(0)
        s_sub_u32 s80, s80, s96
        s_sub_u32 s82, s82, s98
        v_mov_b32 v16, s13
        v_mov_b32 v17, s80
        v_mov_b32 v18, s82
        v_mov_b32 v19, s98
        v_mov_b32 v1, s12
        s_mov_b64 exec, 1
        global_store_dwordx4 v1, v[8:11], s[54:55]
        global_store_dwordx4 v1, v[12:15], s[54:55] offset:16
        global_store_dwordx4 v1, v[16:19], s[54:55] offset:32
        ''')
    a.label('END')
    a('s_endpgm')

    a.label('KG_SLOW')
    cv = [0]
    def emit(row, x, neg):
        t = 40 + cv[0] % 4; cv[0] += 1
        a('v_cvt_pk_bf16_f32 v%d, v%d, %sv%d' % (t, x, '-' if neg else '', x + 1))
        wrow(row, t)
    m0(0)
    a('v_mov_b32 v43, 0x3f80')
    wrow(0, 43)
    emit(1, 24, False)
    for k in range(2, 33):
        if k == 16: m0(11)
        cmul(26, 24 if k == 2 else 26, 24)
        if k < 32: emit(k, 26, False)
    for s in range(4):
        a('ds_read_b128 %s, v44 offset:%d' % (vr(64 + 8 * s, 4), 64 * s))
        a('ds_read_b128 %s, v44 offset:%d' % (vr(68 + 8 * s, 4), 16 * PITCH + 64 * s))
    m0(0)
    a('v_mov_b32 v29, 0x3c00')
    wrow(0, 29)
    m0(1)
    emit(BROW[0], 30, True)
    cur = 30
    for r in range(1, 9):
        dst = 24 if r % 2 else 30 + r
        cmul(dst, cur, 22)
        cur = dst
        emit(BROW[r], cur, True)
    for r, base in TAILB:
        cmul(30 + r, 30 + r, 26)
        emit(BROW[base], 30 + r, True)
    kg_tail('bf16', 'S')
    a('s_branch KG_JOIN')
    return a

def wrap(a):
    hdr = open('gated_mix__ssm_conv_s4__ssm_conv_s4d__prompt.s.ref').read().split('; @launch')[0]
    s = hdr + '; @launch grid=(256,1,1) block=(768,1,1) lds=%d\n' % LDS_TOTAL
    s += '.amdgcn_target "amdgcn-amd-amdhsa--gfx950"\n.text\n.globl %s\n.p2align 8\n.type %s,@function\n%s:\n' % (NAME, NAME, NAME)
    s += a.text()
    s += '''.section .rodata,"a"
.p2align 6
.amdhsa_kernel %s
  .amdhsa_next_free_vgpr 168
  .amdhsa_next_free_sgpr 102
  .amdhsa_accum_offset 168
  .amdhsa_group_segment_fixed_size 0
  .amdhsa_kernarg_size 160
  .amdhsa_user_sgpr_count 2
  .amdhsa_user_sgpr_kernarg_segment_ptr 1
  .amdhsa_system_sgpr_workgroup_id_x 1
.end_amdhsa_kernel
''' % NAME
    return s

if __name__ == '__main__':
    base = sys.argv[1]
    opt = dict((k, int(v)) for k, v in (x.split('=') for x in sys.argv[2:]))
    for sfx, st in (('', None), ('c', 's_memtime')):
        a = gen(stamps=st, opt=opt)
        bad = check(a.lines)
        for b in bad: print('HAZARD', b)
        open(base + sfx + '.s', 'w').write(wrap(a))
    print('written', base, len(a.lines), 'lines')
```
